```python
import torch

def _softmax(x, axis=-1):
    return torch.softmax(x, dim=axis)
def _gelu(x):
    return torch.nn.functional.gelu(x, approximate="tanh")
def _silu(x):
    return torch.nn.functional.silu(x)
def _sigmoid(x):
    return torch.sigmoid(x)
def _layernorm(x, axis=-1, eps=1e-5):
    m = x.mean(dim=axis, keepdim=True)
    v = x.var(dim=axis, keepdim=True, unbiased=False)
    return (x - m) / torch.sqrt(v + eps)
def _scatter_add(tgt, idx, src, axis=0):
    return tgt.clone().index_add_(axis, idx, src)
def _segment_sum(src, seg, n):
    out = torch.zeros((n,) + src.shape[1:], dtype=src.dtype)
    return out.index_add_(0, seg, src)
def _pad(x, pw):
    flat = tuple(v for pair in reversed(pw) for v in pair)
    return torch.nn.functional.pad(x, flat)

kernel_name = 'gated_mix__spectral_fnet__grouped_kv_mqa__prompt'

def setup_inputs():

    _w = (lambda a: (lambda t: t.to(torch.bfloat16) if t.is_floating_point() else t)(torch.as_tensor(a)))
    def _A_setup():
        B, S, D = 1, 2048, 576
        ns = torch.arange(S)[:, None] * torch.arange(S)[None, :]
        nd = torch.arange(D)[:, None] * torch.arange(D)[None, :]
        Ws_re = torch.cos(-2.0 * torch.pi * ns / S).to(float)
        Ws_im = torch.sin(-2.0 * torch.pi * ns / S).to(float)
        Wd_re = torch.cos(-2.0 * torch.pi * nd / D).to(float)
        Wd_im = torch.sin(-2.0 * torch.pi * nd / D).to(float)
        return {
            "x": _w((lambda *s: torch.randn(*s, dtype=torch.bfloat16) * 0.05)(B, S, D)),
            "dft_seq_re": _w(Ws_re),
            "dft_seq_im": _w(Ws_im),
            "dft_hid_re": _w(Wd_re),
            "dft_hid_im": _w(Wd_im),
        }
    _A_in = _A_setup()

    def _B_setup():
        B, S, D, H = 1, 2048, 576, 32
        Dh = D // H
        return {
            "x": _w((lambda *s: torch.randn(*s, dtype=torch.bfloat16) * 0.05)(B, S, D)),
            "wq": _w((lambda *s: torch.randn(*s, dtype=torch.bfloat16) * 3.2)(D, H * Dh)),
            "wk": _w((lambda *s: torch.randn(*s, dtype=torch.bfloat16) * 3.2)(D, Dh)),
            "wv": _w((lambda *s: torch.randn(*s, dtype=torch.bfloat16) * 0.4)(D, Dh)),
            "wo": _w((lambda *s: torch.randn(*s, dtype=torch.bfloat16) * 0.4)(H * Dh, D)),
        }
    _B_in = _B_setup()

    return {
        "A_x": _A_in["x"],
        "A_dft_seq_re": _A_in["dft_seq_re"],
        "A_dft_seq_im": _A_in["dft_seq_im"],
        "A_dft_hid_re": _A_in["dft_hid_re"],
        "A_dft_hid_im": _A_in["dft_hid_im"],
        "B_x": _B_in["x"],
        "B_wq": _B_in["wq"],
        "B_wk": _B_in["wk"],
        "B_wv": _B_in["wv"],
        "B_wo": _B_in["wo"],
        "gate_w": _w((lambda *s: torch.randn(*s, dtype=torch.bfloat16) * 0.05)(576) * 16.0),
    }

def reference(A_x, A_dft_seq_re, A_dft_seq_im, A_dft_hid_re, A_dft_hid_im, B_x, B_wq, B_wk, B_wv, B_wo, gate_w):
    def _A_ref(x, dft_seq_re, dft_seq_im, dft_hid_re, dft_hid_im):
        a = torch.einsum("bsd,ed->bse", x, dft_hid_re)
        b = torch.einsum("bsd,ed->bse", x, dft_hid_im)
        y = torch.einsum("ts,bse->bte", dft_seq_re, a) - torch.einsum("ts,bse->bte", dft_seq_im, b)
        return y

    def _B_ref(x, wq, wk, wv, wo):
        B, S, D = x.shape
        H = 32
        Dh = D // H
        q = (lambda x, *d: x.permute(*d))((x @ wq).reshape(B, S, H, Dh), 0, 2, 1, 3)
        k = x @ wk
        v = x @ wv
        scores = torch.einsum("bhqd,bkd->bhqk", q, k) * (Dh ** -0.5)
        p = _softmax(scores, axis=-1)
        o = torch.einsum("bhqk,bkd->bhqd", p, v)
        return (lambda x, *d: x.permute(*d))(o, 0, 2, 1, 3).reshape(B, S, H * Dh) @ wo

    x = A_x
    g = _sigmoid((x * gate_w).sum(-1, keepdims=True))
    a = _A_ref(x, A_dft_seq_re, A_dft_seq_im, A_dft_hid_re, A_dft_hid_im)
    b = _B_ref(x, B_wq, B_wk, B_wv, B_wo)
    return g * a + (1 - g) * b
```

```python
import re
TRANS = ('v_exp_f32','v_log_f32','v_rcp_f32','v_rsq_f32','v_sqrt_f32','v_sin_f32','v_cos_f32','v_rcp_iflag_f32')
def regs(tok):
    tok = tok.strip()
    neg = tok.lstrip('-').replace('|','')
    m = re.fullmatch(r'([vsa])\[(\d+):(\d+)\]', neg)
    if m: return [(m.group(1), i) for i in range(int(m.group(2)), int(m.group(3))+1)]
    m = re.fullmatch(r'([vsa])(\d+)', neg)
    if m: return [(m.group(1), int(m.group(2)))]
    if neg == 'vcc': return [('s','vcc_lo'),('s','vcc_hi')]
    if neg in ('vcc_lo','vcc_hi'): return [('s',neg)]
    if neg == 'exec': return [('s','exec')]
    if neg == 'm0': return [('s','m0')]
    return []
class I:
    def __init__(s, text):
        s.text = text
        t = text.split(';')[0].strip()
        s.label = t.endswith(':')
        s.op = t.split()[0] if t else ''
        rest = t[len(s.op):].strip()
        ops = [o.strip() for o in re.split(r',\s*(?![^\[]*\])', rest)] if rest else []
        if ops:
            ops[-1] = ops[-1].split()[0] if ops[-1] else ops[-1]
        s.ops = ops
        op = s.op
        s.mfma = op.startswith('v_mfma') or op.startswith('v_smfmac')
        s.valu = op.startswith('v_') and not s.mfma
        s.trans = op.replace('_e32','').replace('_e64','') in TRANS
        s.vmem = op.startswith('buffer_') or op.startswith('global_')
        s.ds = op.startswith('ds_')
        s.salu = op.startswith('s_')
        s.lds_dma = s.vmem and (' lds' in t or 'load_lds' in op)
        s.w = []; s.r = []; s.cread = []; s.abread = []; s.passes = 0; s.storedata = []
        R = [regs(o) for o in ops]
        flat = lambda xs: [x for y in xs for x in y]
        if s.mfma:
            s.w = R[0]; s.abread = R[1]+R[2]
            if op.startswith('v_smfmac'):
                s.cread = R[0]; s.abread += R[3]
            else: s.cread = R[3]
            s.r = s.abread + s.cread
            s.passes = 16 if '_2b_' in op else (8 if '32x32' in op else 4)
        elif s.valu:
            if op.startswith('v_cmp'):
                s.w = R[0]; s.r = flat(R[1:])
            elif op.startswith('v_readfirstlane') or op.startswith('v_readlane'):
                s.w = R[0]; s.r = flat(R[1:])
            elif op.startswith('v_permlane') and 'swap' in op:
                s.w = R[0]+R[1]; s.r = R[0]+R[1]
            elif op.startswith(('v_add_co','v_sub_co','v_addc_co','v_subb_co','v_mad_u64')):
                s.w = R[0]+R[1]; s.r = flat(R[2:])
            else:
                s.w = R[0]; s.r = flat(R[1:])
                if op.startswith(('v_fmac','v_dot2c','v_mac')) or 'dst_unused:UNUSED_PRESERVE' in t or op.startswith('v_writelane'): s.r += R[0]
                if op.startswith('v_cndmask') and len(ops)==3: s.r += regs('vcc')
        elif s.vmem:
            if 'store' in op or ('atomic' in op):
                if op.startswith('buffer'):
                    s.storedata = R[0]; s.r = flat(R)
                    if 'atomic' in op and ' sc0' in t: s.w = R[0]
                else:
                    s.r = flat(R); s.storedata = R[1]
            elif s.lds_dma or op in ('buffer_wbl2','buffer_inv'):
                s.r = flat(R) + regs('m0')
            else:
                s.w = R[0]; s.r = flat(R[1:])
        elif s.ds:
            if op.startswith(('ds_read','ds_bpermute','ds_permute','ds_swizzle')) or '_rtn' in op:
                s.w = R[0]; s.r = flat(R[1:])
            else: s.r = flat(R)
        elif s.salu:
            if op.startswith(('s_cmp','s_cbranch','s_branch','s_waitcnt','s_nop','s_barrier','s_sleep','s_setprio','s_endpgm')):
                s.r = flat(R)
            else:
                s.w = R[0] if R else []; s.r = flat(R[1:])
        s.states = 1
        if op == 's_nop': s.states = int(ops[0])+1
        if s.label or not op or op.startswith('.'): s.states = 0
def need(p, c):
    n = 0
    pw = set(p.w); cr = set(c.r); cw = set(c.w)
    pv = {x for x in pw if x[0] in 'va'}; ps = {x for x in pw if x[0]=='s'}
    if p.valu:
        if c.mfma and pv & cr: n = max(n,2)
        if p.trans and c.valu and not c.trans and pv & cr: n = max(n,1)
        if c.op.startswith(('v_readfirstlane','v_readlane')) and pv & cr: n = max(n,1)
        if c.op.startswith('v_permlane') and pv & cr: n = max(n,2)
        if 'dpp' in c.text and c.valu and pv & cr: n = max(n,2)
        if ps & cr:
            if c.valu: n = max(n, 4 if c.op.startswith(('v_readlane','v_writelane')) else 2)
            if c.vmem: n = max(n,5)
            if c.salu: n = max(n,1)
    if p.mfma:
        k = {4:0,8:1,16:2}[p.passes]
        if (c.valu and pv & (cr|cw)) or ((c.vmem or c.ds) and pv & (cr|cw)): n = max(n,(8,12,20)[k])
        if c.mfma:
            if pv & set(c.abread): n = max(n,(8,12,20)[k])
            if pv & set(c.cread) and not (c.cread == p.w and c.passes == p.passes): n = max(n,(6,10,18)[k])
            if pv & cw and not c.cread == p.w and not (pv & set(c.cread)): n = max(n,0)
        if c.valu and set(p.cread) & cw: n = max(n,(3,7,15)[k])
    if p.salu and ('s','m0') in pw and c.lds_dma: n = max(n,1)
    if p.vmem and len(p.storedata) >= 3 and set(p.storedata) & cw: n = max(n, 2 if c.valu else 1)
    return n
class Em:
    def __init__(s): s.L = []; s.pads = []
    def __call__(s, text):
        for line in text.split('\n'):
            if line.strip(): s.add(line)
    def add(s, line):
        ins = I(line if line.strip().endswith(':') else '    '+line.strip())
        if ins.states:
            d = 0; req = 0
            for p in reversed(s.L):
                if d >= 20: break
                if p.op in ('s_branch','s_endpgm','s_setpc_b64'): break
                if p.states:
                    req = max(req, need(p, ins) - d)
                d += p.states
            if req > 0:
                s.pads.append((len(s.L), req, ins.text.strip()))
                s.L.append(I(f'    s_nop {req-1}'))
        s.L.append(ins)
    def text(s): return '\n'.join(i.text for i in s.L)+'\n'
```

```python
import sys, struct, math
from emit import Em
NAME = 'gated_mix__spectral_fnet__grouped_kv_mqa__prompt'
def fbits(x): return '0x%08x' % struct.unpack('<I', struct.pack('<f', x))[0]
CSCALE = math.log2(math.e)/math.sqrt(18.0)
FLAG0 = 4096
FK, FF, FO, FU, FY = 0, 256, 512, 768, 1536
KV0 = 0x50000; O0 = 0x80000; F0 = 0x2C0000; U0 = 0x410000; Y0 = 0x570000; YK = 1088*640; ST0 = 0x6D0000
WS_USED = 0x700000
CH = 9216
EXL = 15*CH; QXL = 16*CH; CNT = QXL + 10240; GWL = CNT + 256; PART = 5*CH; OXL = 11*CH
WQS = [3, 4, 5, 6, 7, 11, 12, 13, 14]
XL = [13*CH, 14*CH, 0, 8192, 16384, 8*CH, 8*CH+8192, 8*CH+16384, 16*CH]
LDS_BYTES = 163840
cE, cKV, cF, cK1, cK2, cP2, cP4, cA, cD, cC, cW, cB, cPR, cXL, cXR = [CNT+x for x in (0, 4, 8, 12, 96, 24, 32, 40, 44, 48, 52, 64, 80, 56, 60)]
cK3 = cK2 + 4
YQ = 1088*8
SPIN = 200000; GSPIN = 20000
SHIFT = 100.0
sQB, sHG, sE, sROT, sCROT = 4, 5, 6, 8, 9
pX, pCS, pSS, pCD, pSD, pWQ, pWK, pWV, pWO, pGW, pOUT, pDBG, pWS = 16, 18, 20, 22, 24, 28, 30, 32, 34, 36, 38, 40, 42
rWS, rA, rB = 44, 48, 92
LANE = 1

class G:
    def __init__(s, diag=False, opts=None):
        s.e = Em(); s.n = 0; s.diag = diag; s.o = opts or {}
    def __call__(s, t): s.e(t)
    def lab(s, p='L'): s.n += 1; return f'{p}_{s.n}'
    def srd(s, r, p, size):
        s(f's_mov_b32 s{r}, s{p}\ns_mov_b32 s{r+1}, s{p+1}\ns_mov_b32 s{r+2}, {size}\ns_mov_b32 s{r+3}, 0x20000')
    def srd_sel(s, r, pa, pb, size):
        s(f's_cselect_b32 s{r}, s{pa}, s{pb}\ns_cselect_b32 s{r+1}, s{pa+1}, s{pb+1}\ns_mov_b32 s{r+2}, {size}\ns_mov_b32 s{r+3}, 0x20000')
    def stamp(s, k):
        if s.diag: s(f's_memtime s[{64+2*k}:{65+2*k}]')
    def flush_stamps(s, n, vt):
        if not s.diag: return
        s('s_waitcnt lgkmcnt(0)\ns_mov_b64 exec, 1')
        s(f's_mul_i32 s63, s2, 12\ns_add_u32 s63, s63, s3\ns_lshl_b32 s63, s63, 6\ns_add_u32 s63, s63, {ST0}')
        for k in range(n):
            s(f'v_mov_b32 v{vt}, s{64+2*k}\nbuffer_store_dword v{vt}, off, s[{rWS}:{rWS+3}], s63 offset:{4*k}')
        s(f's_memrealtime s[64:65]\ns_waitcnt lgkmcnt(0)\nv_mov_b32 v{vt}, s64\nbuffer_store_dword v{vt}, off, s[{rWS}:{rWS+3}], s63 offset:60')
        s(f'v_mov_b32 v{vt}, s62\nbuffer_store_dword v{vt}, off, s[{rWS}:{rWS+3}], s63 offset:56')
        s('s_mov_b64 exec, -1')
    def get_epoch(s, vE):
        s(f'v_readfirstlane_b32 s{sE}, v{vE}\ns_mul_i32 s{sE}, s{sE}, 1664525\ns_add_u32 s{sE}, s{sE}, 1013904223\ns_not_b32 s{sE+1}, s{sE}')
    def poll(s, addrs, vt, mask=None, sleep=2, soffs=None):
        L, D = s.lab('Lpoll'), s.lab('Lpd')
        s(f's_mov_b32 s15, {GSPIN}')
        if mask is not None: s(f's_mov_b64 exec, {mask}')
        s(f'{L}:')
        for i, a in enumerate(addrs):
            s(f'buffer_load_dwordx2 v[{vt+2*i}:{vt+2*i+1}], v{a}, s[{rWS}:{rWS+3}], 0 offen sc1')
        s('s_waitcnt vmcnt(0)')
        s(f'v_cmp_ne_u64 vcc, s[{sE}:{sE+1}], v[{vt}:{vt+1}]')
        for i in range(1, len(addrs)):
            s(f'v_cmp_ne_u64 s[12:13], s[{sE}:{sE+1}], v[{vt+2*i}:{vt+2*i+1}]\ns_or_b64 vcc, vcc, s[12:13]')
        s(f's_cbranch_vccz {D}\ns_sleep {sleep}\ns_sub_u32 s15, s15, 1\ns_cbranch_scc0 {L}\n{D}:')
        if mask is not None: s('s_mov_b64 exec, -1')
    def set_flag(s, sidx, vt):
        s(f's_lshl_b32 s14, s{sidx}, 7\ns_add_u32 s14, s14, {FLAG0}\ns_mov_b64 exec, 1')
        s(f'v_mov_b32 v{vt}, s{sE}\nv_mov_b32 v{vt+1}, s{sE+1}')
        s(f'buffer_store_dwordx2 v[{vt}:{vt+1}], off, s[{rWS}:{rWS+3}], s14 sc1\ns_mov_b64 exec, -1')
    def lds_add(s, addr_v, vt, off=0, rtn=False):
        s(f's_mov_b64 exec, 1\nv_mov_b32 v{vt}, 1')
        if rtn: s(f'ds_add_rtn_u32 v{vt}, v{addr_v}, v{vt} offset:{off}')
        else: s(f'ds_add_u32 v{addr_v}, v{vt} offset:{off}')
        s('s_mov_b64 exec, -1')
    def lds_spin(s, addr_v, off, val, vt, sleep=1):
        L, D = s.lab('Lspin'), s.lab('Lsd')
        s(f's_mov_b32 s15, {SPIN}\n{L}:\nds_read_b32 v{vt}, v{addr_v} offset:{off}\ns_waitcnt lgkmcnt(0)\nv_readfirstlane_b32 s14, v{vt}')
        s(f's_cmp_ge_u32 s14, {val}\ns_cbranch_scc1 {D}\ns_sleep {sleep}\ns_sub_u32 s15, s15, 1\ns_cbranch_scc0 {L}\n{D}:')
    def last_arriver_flag(s, vz, off, n, sidx_code, vt):
        S = s.lab('Lnf')
        s('s_waitcnt vmcnt(0)')
        s.lds_add(vz, vt, off, rtn=True)
        s(f's_waitcnt lgkmcnt(0)\nv_readfirstlane_b32 s14, v{vt}\ns_cmp_eq_u32 s14, {n-1}\ns_cbranch_scc0 {S}')
        s(sidx_code); s.set_flag(13, vt); s(f'{S}:')
    def next_rb(s, sr):
        s(f's_add_u32 s{sr}, s{sr}, 1\ns_cmp_eq_u32 s{sr}, 9\ns_cselect_b32 s{sr}, 0, s{sr}')
    def wq_slot_base(s, sd, sr):
        s(f's_cmp_lt_u32 s{sr}, 5\ns_cselect_b32 s{sd}, 3, 6\ns_add_u32 s{sd}, s{sd}, s{sr}\ns_mul_i32 s{sd}, s{sd}, {CH}')
    def piece_decode(s, cls, vrho, vpc, t):
        s(f'v_lshl_add_u32 v{t}, {cls}, 6, v{LANE}')
        s(f'v_mul_u32_u24 v{vrho}, 7282, v{t}\nv_lshrrev_b32 v{vrho}, 16, v{vrho}')
        s(f'v_mul_u32_u24 v{vpc}, 9, v{vrho}\nv_sub_u32 v{vpc}, v{t}, v{vpc}')
        s(f'v_bfe_u32 v{t}, v{vrho}, 1, 2\nv_and_or_b32 v{t}, v{vrho}, 56, v{t}\nv_and_b32 v{vrho}, 1, v{vrho}\nv_lshl_or_b32 v{vrho}, v{vrho}, 2, v{t}')
    def kv_chunk_dma(s, sG, slds, vl16):
        s(f's_mul_i32 s12, s{sG}, {CH}\ns_add_u32 s12, s12, {KV0}\ns_mov_b32 s13, s{slds}')
        for grp in range(3):
            s('s_mov_b32 m0, s13')
            for p in range(4 if grp < 2 else 1):
                s(f'buffer_load_dwordx4 v{vl16}, s[{rWS}:{rWS+3}], s12 offen offset:{1024*p} sc1 lds')
            if grp < 2: s('s_add_u32 s12, s12, 4096\ns_add_u32 s13, s13, 4096')

    def entry(s):
        s(f'''s_cmp_ge_u32 s2, 256
s_cbranch_scc1 Lend
s_load_dwordx16 s[16:31], s[0:1], 0
s_load_dwordx8 s[32:39], s[0:1], 64
s_load_dwordx4 s[40:43], s[0:1], 96''')
        if s.diag: s('s_memrealtime s[62:63]'); s.stamp(0)
        s(f'''v_lshrrev_b32 v2, 6, v0
v_and_b32 v{LANE}, 63, v0
v_readfirstlane_b32 s3, v2
v_mov_b32 v3, 0
v_lshlrev_b32 v4, 2, v{LANE}
v_add_u32 v4, {CNT}, v4
s_and_b32 s4, s2, 7
s_lshl_b32 s4, s4, 2
s_bfe_u32 s5, s2, 0x20003
s_add_u32 s{sQB}, s4, s5
s_lshr_b32 s{sHG}, s2, 5
s_add_u32 s{sROT}, s{sQB}, s{sHG}
s_mul_i32 s10, s{sROT}, 57
s_lshr_b32 s10, s10, 9
s_mul_i32 s10, s10, 9
s_sub_u32 s{sROT}, s{sROT}, s10
s_bfe_u32 s{sCROT}, s2, 0x30003
s_cmp_lg_u32 s3, 0
s_cbranch_scc1 Lnoinit
ds_write_b32 v4, v3
Lnoinit:
s_waitcnt lgkmcnt(0)''')
        s.stamp(10)
        s('s_barrier')
        s.stamp(11)
        s.srd(rWS, pWS, WS_USED)
        s(f'buffer_load_dword v2, off, s[{rWS}:{rWS+3}], 0')
        s(f'v_mov_b32 v3, {CNT}')
        s('s_cmp_ge_u32 s3, 8\ns_cbranch_scc1 Lhelper')
        s('s_and_b32 s10, s3, 3\ns_lshr_b32 s11, s3, 2')
        s('s_cmp_eq_u32 s10, 0\ns_cbranch_scc1 Lrole0\ns_cmp_eq_u32 s3, 1\ns_cbranch_scc1 Lrole1\ns_cmp_eq_u32 s3, 6\ns_cbranch_scc1 Lrole1')

    def role_loader(s):
        s.srd(rA, pWQ, 576*1152)
        s.attn_init()
        s('s_sub_u32 s60, s3, 1\ns_lshr_b32 s60, s60, 1      ; a\ns_add_u32 s61, s60, 4')
        s(f's_mul_i32 s12, s{sHG}, 144')
        for k, cls in enumerate(('s60', 's61', '8')):
            s.piece_decode(cls, 10, 11, 12)
            s(f'v_mul_u32_u24 v10, 1152, v10\nv_lshl_add_u32 v10, v11, 4, v10\nv_add_u32 v{5+k}, s12, v10')
        s(f's_lshl_b32 s58, s60, 10\ns_lshl_b32 s59, s61, 10\ns_mov_b32 s57, s{sROT}')
        s(f's_lshl_b32 s12, s60, 2\nv_add_u32 v8, s12, v3')
        def prog(p, n): s(f's_waitcnt vmcnt({n})\nv_mov_b32 v9, {p}\nds_write_b32 v8, v9 offset:{cPR-CNT}')
        for i in range(9):
            if i == 7:
                for p in (4, 5, 6): prog(p, 2*(7-p))
                s.lds_spin(3, cXR-CNT, 6, 9, sleep=0)
            base = WQS[i]*CH
            s(f's_mul_i32 s55, s57, {64*1152}')
            s(f's_add_u32 m0, s58, {base}\nbuffer_load_dwordx4 v5, s[{rA}:{rA+3}], s55 offen lds')
            s(f's_add_u32 m0, s59, {base}\nbuffer_load_dwordx4 v6, s[{rA}:{rA+3}], s55 offen lds')
            S = s.lab('Lc8')
            s(f's_cmp_eq_u32 s60, {i%4}\ns_cbranch_scc0 {S}\ns_mov_b32 m0, {base+8192}\nbuffer_load_dwordx4 v7, s[{rA}:{rA+3}], s55 offen lds\n{S}:')
            if i < 8: s.next_rb(57)
            if 4 <= i < 7: prog(i-3, 8)
        for p in (7, 8, 9): prog(p, 2*(9-p))
        s.get_epoch(2)
        s.stamp(1)
        s('s_and_b32 s12, s60, 1\ns_cbranch_scc1 Lattn')
        s(f's_lshl_b32 s57, s11, 3')
        for k in (1, 2):
            s(f's_add_u32 s{57+k}, s{sCROT}, {k}\ns_and_b32 s{57+k}, s{57+k}, 7\ns_add_u32 s{57+k}, s{57+k}, s57')
        s(f's_mul_i32 s12, s58, {12*128}\ns_mul_i32 s13, s59, {12*128}\ns_sub_u32 s13, s13, {12*128}')
        s(f'v_mov_b32 v6, s12\nv_mov_b32 v7, s13\nv_cmp_gt_u32 vcc, 12, v{LANE}\nv_cndmask_b32 v6, v7, v6, vcc')
        s(f'v_lshl_add_u32 v6, v{LANE}, 7, v6\nv_add_u32 v6, {FLAG0+FK*128}, v6\nv_lshlrev_b32 v5, 4, v{LANE}')
        s.poll([6], 8, mask='0xffffff', sleep=2)
        for k in (1, 2):
            s(f's_add_u32 s60, s57, {k}\ns_mul_i32 s60, s60, {CH}')
            s.kv_chunk_dma(57+k, 60, 5)
        s.stamp(3)
        s('s_branch Lattn')

    def role0(s):
        s('Lrole0:\ns_setprio 3')
        if s.diag and s.o.get('waitE'): s('s_waitcnt vmcnt(0)')
        s.stamp(12)
        s(f'v_lshlrev_b32 v5, 4, v{LANE}')
        s(f's_cmp_ge_u32 s{sHG}, 6\ns_cbranch_scc1 Lnoex')
        s(f's_cmp_lt_u32 s{sHG}, 3'); s.srd_sel(rA, pWK, pWV, 576*36)
        s(f's_cmp_lt_u32 s{sHG}, 3\ns_cselect_b32 s12, 0, 3\ns_sub_u32 s12, s{sHG}, s12\ns_lshl_b32 s12, s12, 4')
        s(f'v_mul_u32_u24 v6, 36, v{LANE}\nv_add_u32 v6, s12, v6')
        s(f's_mul_i32 s12, s11, {5*2304}\ns_mul_i32 s13, s11, 5120\ns_add_u32 s13, s13, {EXL}')
        for b in range(5):
            if b == 4: s('s_cmp_eq_u32 s11, 1\ns_cbranch_scc1 Lnoex')
            s(f's_mov_b32 m0, s13\nbuffer_load_dwordx4 v6, s[{rA}:{rA+3}], s12 offen lds\ns_add_u32 s12, s12, 2304\ns_add_u32 s13, s13, 1024')
        s('Lnoex:')
        s('s_cmp_eq_u32 s11, 0\ns_cbranch_scc1 Lnogw')
        s.srd(rB, pGW, 1152)
        s(f's_mov_b32 m0, {GWL}\nbuffer_load_dwordx4 v5, s[{rB}:{rB+3}], 0 offen lds\nbuffer_load_dwordx4 v5, s[{rB}:{rB+3}], 0 offen offset:1024 lds')
        s('Lnogw:')
        s('s_waitcnt vmcnt(0)')
        s.lds_add(3, 7, cE-CNT)
        s.get_epoch(2)
        s.stamp(1)
        s.attn_init()
        s.lds_spin(3, cXR-CNT, 6, 7, sleep=1)
        s(f's_lshl_b32 s60, s11, 3\ns_add_u32 s61, s60, s{sCROT}      ; G0\ns_mul_i32 s12, s61, {12*128}\ns_add_u32 s12, s12, {FLAG0+FK*128}')
        s(f'v_lshlrev_b32 v6, 7, v{LANE}\nv_add_u32 v6, s12, v6')
        s.poll([6], 8, mask='0xfff', sleep=1)
        s.stamp(2)
        s(f's_mul_i32 s60, s60, {CH}')
        s.kv_chunk_dma(61, 60, 5)
        s('s_waitcnt vmcnt(0)')
        s.stamp(3)
        s('s_branch Lattn')

    def role1(s):
        s('Lrole1:')
        s(f's_lshl_b32 s12, s11, 6\nv_add_u32 v5, s12, v{LANE}        ; it')
        s(f'v_cmp_le_u32 vcc, 80, v5                 ; special\ns_mov_b64 s[58:59], vcc')
        s(f'v_and_b32 v6, 15, v5\nv_lshrrev_b32 v7, 4, v5\nv_subrev_u32 v8, 80, v5\nv_cndmask_b32 v7, v7, v8, s[58:59]     ; pi')
        s(f's_mul_i32 s12, s{sHG}, 5\nv_add_u32 v7, s12, v7          ; piece')
        s(f'v_cndmask_b32 v6, v6, 0, s[58:59]')
        s(f's_cmp_eq_u32 s{sQB}, 0\ns_cselect_b32 s12, 5, 0\ns_add_u32 s12, s12, 80\nv_cmp_gt_u32 s[60:61], s12, v5\nv_cmp_gt_u32 vcc, 38, v7\ns_and_b64 s[60:61], s[60:61], vcc')
        s(f'v_min_u32 v7, 37, v7')
        s(f's_cmp_eq_u32 s{sQB}, 0\ns_cselect_b64 s[12:13], -1, 0\nv_cmp_eq_u32 vcc, 0, v6\ns_and_b64 s[56:57], vcc, s[12:13]')
        s('s_andn2_b64 s[54:55], s[56:57], s[58:59]     ; plain s==0')
        s(f'v_lshrrev_b32 v9, 1, v6\nv_lshlrev_b32 v10, 7, v6')
        s(f'v_sub_u32 v11, 71, v7\nv_sub_u32 v12, 72, v7\nv_min_u32 v12, 71, v12\ns_sub_u32 s12, 9, s{sROT}')
        for src, dst in ((7, 13), (11, 14), (12, 15)):
            s(f'v_lshrrev_b32 v16, 3, v{src}\nv_add_u32 v16, s12, v16\nv_subrev_u32 v17, 9, v16\nv_min_u32 v16, v16, v17          ; pos')
            s(f'v_lshlrev_b32 v17, 13, v16\nv_mul_u32_u24 v18, {CH}, v16')
            s(f'v_add_u32 v18, {13*CH}, v18\nv_subrev_u32 v19, {2*8192}, v17\nv_cmp_gt_u32 vcc, 2, v16\nv_cndmask_b32 v18, v19, v18, vcc')
            s(f'v_add_u32 v19, {8*CH-5*8192}, v17\nv_cmp_gt_u32 vcc, 5, v16\nv_cndmask_b32 v18, v19, v18, vcc')
            s(f'v_mov_b32 v19, {16*CH}\nv_cmp_gt_u32 vcc, 8, v16\nv_cndmask_b32 v18, v19, v18, vcc')
            s(f'v_xor_b32 v17, v{src}, v9\nv_and_b32 v17, 7, v17\nv_lshl_add_u32 v17, v17, 4, v10\nv_add_u32 v{dst}, v17, v18')
        s(f'v_mov_b32 v16, {3*2048}\nv_cndmask_b32 v16, 0, v16, s[58:59]')
        for r in (13, 14, 15): s(f'v_add_u32 v{r-3}, v{r}, v16')
        RAW = 20
        s.lds_spin(3, cXL-CNT, 4, 16, sleep=0)
        for j in range(4):
            ad = (10, 11, 12) if j == 0 else (13, 14, 15)
            s(f'ds_read_b128 v[{RAW+8*j}:{RAW+8*j+3}], v{ad[0]} offset:{2048*j}')
            s(f'ds_read_b128 v[{RAW+8*j+4}:{RAW+8*j+7}], v{ad[1]} offset:{2048*j}')
            s(f'ds_read_u16 v{52+j}, v{ad[2]} offset:{2048*j}')
        s(f'v_cmp_gt_u32 vcc, 36, v7\nv_cndmask_b32 v17, 0, -1, vcc             ; mB')
        s(f'v_cmp_eq_u32 vcc, 36, v7\nv_mov_b32 v16, 0xffff\nv_cndmask_b32 v16, v17, v16, vcc       ; mA')
        s(f'v_cmp_eq_u32 s[12:13], 0, v7\ns_or_b64 vcc, vcc, s[12:13]\nv_cndmask_b32 v18, -1, 0, vcc     ; mC')
        s(f's_lshr_b32 s12, s{sQB}, 1\nv_mov_b32 v9, s12\nv_cndmask_b32 v9, v9, 16, s[58:59]      ; sigma')
        s(f'v_mul_u32_u24 v9, 19, v9\nv_lshrrev_b32 v10, 1, v7\nv_add_lshl_u32 v9, v9, v10, 10')
        s(f's_and_b32 s12, s{sQB}, 1\ns_lshl_b32 s12, s12, 4\nv_add_u32 v10, s12, v6')
        s(f'v_and_b32 v11, 1, v7\nv_lshl_add_u32 v10, v11, 5, v10\nv_lshl_add_u32 v19, v10, 4, v9')
        s('s_waitcnt vmcnt(0) lgkmcnt(0)')
        s.lds_add(3, 8, cXR-CNT)
        s.get_epoch(2)
        for j, m in ((1, 's[54:55]'), (2, 's[58:59]'), (3, 's[56:57]')):
            s(f's_mov_b64 exec, {m}')
            for r in list(range(RAW+8*j, RAW+8*j+8))+[52+j]: s(f'v_mov_b32 v{r}, 0')
        s('s_mov_b64 exec, -1')
        A = 56; B = 88; P = 120
        for j in range(4):
            d = RAW+8*j; m = d+4
            for q in range(4):
                s(f'v_lshlrev_b32 v{A+8*j+2*q}, 16, v{d+q}\nv_and_b32 v{A+8*j+2*q+1}, 0xffff0000, v{d+q}')
            s(f'v_and_b32 v{52+j}, v18, v{52+j}\nv_lshlrev_b32 v{B+8*j}, 16, v{52+j}')
            for i in range(1, 8):
                pos = 8-i
                if pos & 1: s(f'v_and_b32 v{B+8*j+i}, 0xffff0000, v{m+pos//2}')
                else: s(f'v_lshlrev_b32 v{B+8*j+i}, 16, v{m+pos//2}')
        pk = lambda d, a, b, neg=False: s(f'v_pk_add_f32 v[{d}:{d+1}], v[{a}:{a+1}], v[{b}:{b+1}]' + (' neg_lo:[0,1] neg_hi:[0,1]' if neg else ''))
        for r in range(0, 32, 2):
            pk(P+r, A+r, B+r); pk(B+r, A+r, B+r, True)
        for i in range(0, 8, 2):
            pk(A+i, P+i, P+8+i); pk(A+8+i, P+16+i, P+24+i)
            pk(A+16+i, B+i, B+8+i, True); pk(A+24+i, B+16+i, B+24+i, True)
            pk(P+i, A+i, A+8+i); pk(P+8+i, A+i, A+8+i, True)
            pk(P+16+i, A+16+i, A+24+i, True); pk(P+24+i, A+16+i, A+24+i)
        s('s_mov_b64 exec, s[60:61]')
        L = s.lab('Lnofold'); s(f's_cbranch_execz {L}')
        for ty in range(4):
            for q in range(4):
                s(f'v_cvt_pk_bf16_f32 v{RAW+4*ty+q}, v{P+8*ty+2*q}, v{P+8*ty+2*q+1}')
                s(f'v_and_b32 v{RAW+4*ty+q}, v{16 if q==0 else 17}, v{RAW+4*ty+q}')
            s(f's_mov_b32 s12, {F0+ty*17*19*1024}\nbuffer_store_dwordx4 v[{RAW+4*ty}:{RAW+4*ty+3}], v19, s[{rWS}:{rWS+3}], s12 offen sc1')
        s(f'{L}:\ns_mov_b64 exec, -1')
        s.stamp(1)
        s.attn_init()
        s.last_arriver_flag(3, cF-CNT, 2, f's_lshl_b32 s13, s{sQB}, 3\ns_add_u32 s13, s13, s{sHG}\ns_add_u32 s13, s13, {FF}', 8)
        s.stamp(2)

    S = [16, 32]; O = [48, 64]; QA = [80, 84]; QB = [88, 92]
    KA = [96, 100]; KB = [104, 108]; V = [112, 120]; M = [128, 129]
    IDX, AK, AV, AB, CA, Q0, Q1, EPA, EPB, EPT, EPM, T = 130, 131, 132, 133, 134, 135, 136, 137, 138, 139, 140, 142
    def attn_init(s):
        S, O, QA, QB, KA, KB, V, M = s.S, s.O, s.QA, s.QB, s.KA, s.KB, s.V, s.M
        a, b, c = 142, 143, 144
        s(f's_mul_i32 s31, s11, {8*CH}')
        s(f'v_and_b32 v{a}, 31, v{LANE}\nv_lshrrev_b32 v{b}, 5, v{LANE}')
        s(f'v_lshl_add_u32 v{s.AK}, v{LANE}, 4, s31')
        s(f'v_mul_u32_u24 v{c}, 288, v{b}\nv_lshl_add_u32 v{c}, v{a}, 4, v{c}\nv_add_u32 v{s.AV}, s31, v{c}')
        s(f'v_lshl_add_u32 v{s.AB}, v{a}, 4, s31')
        s(f's_lshl_b32 s12, s11, 2\nv_add_u32 v{s.CA}, s12, v3')
        s(f'v_mov_b32 v{s.IDX}, 0xdddddddd')
        s(f'v_cmp_eq_u32 vcc, 18, v{a}\nv_cmp_eq_u32 s[12:13], 20, v{a}\ns_or_b64 vcc, vcc, s[12:13]\nv_mov_b32 v{c}, 0x3f803f80\nv_cndmask_b32 v{c}, 0, v{c}, vcc')
        for k in range(2):
            for i in range(8): s(f'v_mov_b32 v{V[k]+i}, v{c}')
            for i in range(4): s(f'v_mov_b32 v{KB[k]+i}, 0x3f80')
        s(f'v_cmp_gt_u32 s[36:37], 18, v{a}')
        for t in range(2):
            for i in range(16): s(f'v_mov_b32 v{O[t]+i}, 0')
            for i in range(4): s(f'v_mov_b32 v{QB[t]+i}, 0')
        s(f's_mul_i32 s12, s10, 36\ns_add_u32 s12, s12, {QXL}\nv_mul_u32_u24 v{c}, 160, v{a}\nv_add_u32 v{s.Q0}, s12, v{c}\nv_lshl_add_u32 v{s.Q1}, v{b}, 4, v{s.Q0}')
        s(f's_mul_i32 s12, s10, 6144\ns_add_u32 s12, s12, {PART}\nv_lshl_add_u32 v{s.EPA}, v{LANE}, 4, s12')
        s(f's_lshl_b32 s12, s10, 2\nv_add_u32 v{s.EPB}, s12, v3')
        s(f'v_and_b32 v{a}, 15, v{LANE}\nv_bfe_u32 v{c}, v{LANE}, 4, 1')
        s(f'v_mul_u32_u24 v{c}, {18*1024}, v{c}\nv_lshl_add_u32 v{s.EPT}, v{a}, 4, v{c}          ; (q>>4)*18K + s*16')
        s(f'v_lshl_add_u32 v{s.EPM}, v{b}, 8, v{s.EPT}                    ; + h*256')
        s(f's_mul_i32 s12, s{sQB}, {4*18*1024}\ns_add_u32 s12, s12, {O0}')
        s(f's_lshl_b32 s13, s{sHG}, 11\ns_lshl_b32 s14, s10, 9\ns_add_u32 s13, s13, s14\ns_add_u32 s38, s12, s13     ; main')
        s(f's_lshl_b32 s13, s{sHG}, 8\ns_lshl_b32 s14, s10, 2\ns_add_u32 s13, s13, s14\ns_add_u32 s13, s13, {16*1024}\ns_add_u32 s39, s12, s13    ; tail')

    def attention(s):
        S, O, QA, QB, KA, KB, V, M = s.S, s.O, s.QA, s.QB, s.KA, s.KB, s.V, s.M
        IDX, AK, AV, AB, CA, T = s.IDX, s.AK, s.AV, s.AB, s.CA, s.T
        s('Lattn:\ns_setprio 0')
        s.stamp(4)
        s('s_barrier                 ; B5')
        s.stamp(5)
        for t in range(2): s(f'ds_read_b128 v[{QA[t]}:{QA[t]+3}], v{s.Q1} offset:{t*32*160}')
        nkb = 32
        def off(kb):
            c, j = kb//4, kb % 4
            return c*CH + j*1024, c*CH + 4096 + j*1152, c*CH + 8704
        st = {AK: 0, AV: 0, AB: 0}
        def bump(r, o, c):
            if o - st[r] > 65535 - 4096:
                d = c*CH - st[r]; st[r] += d
                return [f'v_add_u32 v{r}, {d}, v{r}']
            return []
        def readsK(kb):
            ka, vv, kbo = off(kb); b = kb % 2
            out = bump(AK, ka, kb//4)
            out.append(f'ds_read_b128 v[{KA[b]}:{KA[b]+3}], v{AK} offset:{ka-st[AK]}')
            if kb % 4 == 0:
                kb4 = KB[(kb//4) % 2]
                out += bump(AB, kbo, kb//4)
                out += ['s_mov_b32 exec_hi, 0', f'ds_read_b128 v[{kb4}:{kb4+3}], v{AB} offset:{kbo-st[AB]}', 's_mov_b64 exec, -1']
            return out
        def readsV(kb):
            ka, vv, kbo = off(kb); b = kb % 2
            out = bump(AV, vv, kb//4)
            return out + ['s_mov_b64 exec, s[36:37]', f'ds_read_b128 v[{V[b]}:{V[b]+3}], v{AV} offset:{vv-st[AV]}',
                          f'ds_read_b128 v[{V[b]+4}:{V[b]+7}], v{AV} offset:{vv+576-st[AV]}', 's_mov_b64 exec, -1']
        s('s_mov_b32 exec_hi, 0')
        for t in range(2): s(f'ds_read_b32 v{QB[t]}, v{s.Q0} offset:{t*32*160+32}')
        s('s_mov_b64 exec, -1')
        for l in readsK(0)+readsV(0)+readsK(1): s(l)
        def QK1(u):
            t = u % 2; b = (u//2) % 2
            return f'v_mfma_f32_32x32x16_bf16 v[{S[t]}:{S[t]+15}], v[{KA[b]}:{KA[b]+3}], v[{QA[t]}:{QA[t]+3}], 0'
        def QK2(u):
            t = u % 2; kb = u//2; a = KB[(kb//4) % 2] + (kb & 2); q = QB[t] + 2*(kb & 1)
            return f'v_mfma_f32_32x32x8_bf16 v[{S[t]}:{S[t]+15}], v[{a}:{a+1}], v[{q}:{q+1}], v[{S[t]}:{S[t]+15}]'
        def PV(u, h):
            t = u % 2; b = (u//2) % 2
            return f'v_smfmac_f32_32x32x32_bf16 v[{O[t]}:{O[t]+15}], v[{V[b]+4*h}:{V[b]+4*h+3}], v[{S[t]+8*h}:{S[t]+8*h+7}], v{IDX}'
        s('s_waitcnt lgkmcnt(0)')
        for t in range(2): s(QK1(t)); s(QK2(t))
        s(f'v_cmp_gt_u32 vcc, 32, v{LANE}')
        for t in range(2):
            x = S[t]
            s(f'v_max3_f32 v{x}, v{x}, v{x+1}, v{x+2}\nv_max3_f32 v{x+3}, v{x+3}, v{x+4}, v{x+5}')
            s(f'v_max3_f32 v{x+6}, v{x+6}, v{x+7}, v{x+8}\nv_max3_f32 v{x+9}, v{x+9}, v{x+10}, v{x+11}')
            s(f'v_max3_f32 v{x+12}, v{x+12}, v{x+13}, v{x+14}\nv_max3_f32 v{x}, v{x}, v{x+3}, v{x+6}')
            s(f'v_max3_f32 v{x+9}, v{x+9}, v{x+12}, v{x+15}\nv_max_f32 v{x}, v{x}, v{x+9}\nv_mov_b32 v{x+1}, v{x}')
        for t in range(2): s(f'v_permlane32_swap_b32 v{S[t]}, v{S[t]+1}')
        for t in range(2):
            x = S[t]
            s(f'v_max_f32 v{x}, v{x}, v{x+1}\nv_sub_f32 v{x}, {fbits(-SHIFT)}, v{x}        ; -(m+SHIFT)')
            s(f'v_and_b32 v{M[t]}, 0xffff0000, v{x}\nv_lshrrev_b32 v{x}, 16, v{x}')
            s(f'v_cndmask_b32 v{QB[t]}, v{x}, v{QB[t]}, vcc\nv_mov_b32 v{QB[t]+3}, v{QB[t]}')
        s.stamp(6)
        s(QK1(0)); s(QK2(0))
        NU = 2*nkb
        p0 = len(s.e.pads)
        for u in range(NU):
            kb = u//2; t = u % 2
            e = [f'v_exp_f32 v{S[t]+i}, v{S[t]+i}' for i in range(16)]
            pre = []; chk = []
            add = lambda av, of: ['s_mov_b64 exec, 1', f'v_mov_b32 v{T}, 1', f'ds_add_u32 v{av}, v{T} offset:{of}', 's_mov_b64 exec, -1']
            nl = 0
            if u == 3: pre += ['s_waitcnt vmcnt(0)'] + add(CA, cK1-CNT)
            if u == 22: pre += add(CA, cP2-CNT)
            if u == 38: pre += add(CA, cP4-CNT)
            if u in (5, 21, 37):
                D = s.lab('Lok')
                av, of = {5: (CA, cK1-CNT), 21: (3, cK2-CNT), 37: (CA, cK2-CNT)}[u]
                pre += [f'v_readfirstlane_b32 s14, v{T+1}', 's_cmp_ge_u32 s14, 4', f's_cbranch_scc1 {D}', ('spin', av, of), f'{D}:']
            if u == 4: pre.append(f'ds_read_b32 v{T+1}, v{CA} offset:{cK1-CNT}')
            if u == 20: pre.append(f'ds_read_b32 v{T+1}, v3 offset:{cK2-CNT}')
            if u == 36: pre.append(f'ds_read_b32 v{T+1}, v{CA} offset:{cK2-CNT}')
            rd = []
            if t == 0 and kb+1 < nkb: rd = readsV(kb+1)
            if t == 1 and kb+2 < nkb: rd = readsK(kb+2)
            pre += rd
            pre.append(f"s_waitcnt lgkmcnt({sum('ds_read' in x for x in rd)})")
            pv2 = [PV(u-1, 1)] if u > 0 else []
            qk1 = [QK1(u+1)] if u+1 < NU else []
            qk2 = [QK2(u+1)] if u+1 < NU else []
            seq = e[0:2]+pv2+e[2:4]+qk1+e[4:7]+qk2+e[7:9]+pre+e[9:11]+[PV(u, 0)]+e[11:16]
            for l in seq:
                if isinstance(l, tuple): s.lds_spin(l[1], l[2], 4, T)
                else: s(l)
        s(PV(NU-1, 1))
        s.loop_pads = s.e.pads[p0:]
        s.stamp(7)
        s('s_cmp_eq_u32 s11, 0\ns_cbranch_scc0 Lkh1')
        s.lds_add(3, T, cA-CNT)
        s.lds_spin(3, cA-CNT, 4, T, sleep=0)
        for t in range(2):
            s(f'v_mov_b32 v{O[t]+11}, v{M[t]}')
            for m in range(3): s(f'ds_write_b128 v{s.EPA}, v[{O[t]+4*m}:{O[t]+4*m+3}] offset:{t*3072+m*1024}')
        s('s_waitcnt lgkmcnt(0)')
        s.lds_add(s.EPB, T, cB-CNT)
        s.stamp(8)
        s.flush_stamps(13, 10)
        s('s_endpgm')
        s('Lkh1:')
        s.lds_spin(s.EPB, cB-CNT, 1, T, sleep=0)
        for t in range(2):
            for m in range(3): s(f'ds_read_b128 v[{S[t]+4*m}:{S[t]+4*m+3}], v{s.EPA} offset:{t*3072+m*1024}')
        s(f'v_cmp_gt_u32 vcc, 32, v{LANE}')
        s('s_waitcnt lgkmcnt(0)')
        for t in range(2):
            o = O[t]; p = S[t]; a, b, c, d = 96+4*t, 97+4*t, 98+4*t, 99+4*t
            s(f'v_min_f32 v{c}, v{M[t]}, v{p+11}\nv_sub_f32 v{a}, v{c}, v{M[t]}\nv_sub_f32 v{b}, v{c}, v{p+11}\nv_exp_f32 v{a}, v{a}\nv_exp_f32 v{b}, v{b}')
            s(f'v_cndmask_b32 v{c}, v{o+8}, v{o+10}, vcc\nv_cndmask_b32 v{d}, v{p+8}, v{p+10}, vcc')
            s(f'v_mul_f32 v{c}, v{c}, v{a}\nv_fmac_f32 v{c}, v{d}, v{b}\nv_rcp_f32 v{c}, v{c}')
            s(f'v_mul_f32 v{c}, {fbits(2.0**-24)}, v{c}\nv_mul_f32 v{a}, v{a}, v{c}\nv_mul_f32 v{b}, v{b}, v{c}')
            for i in range(10): s(f'v_mul_f32 v{o+i}, v{o+i}, v{a}')
            for i in range(10): s(f'v_fmac_f32 v{o+i}, v{p+i}, v{b}')
            for j in range(5): s(f'v_cvt_pk_bf16_f32 v{o+j}, v{o+2*j}, v{o+2*j+1}')
            s(f'buffer_store_dwordx4 v[{o}:{o+3}], v{s.EPM}, s[{rWS}:{rWS+3}], s38 offen sc1')
            s(f's_mov_b32 exec_hi, 0\nbuffer_store_dword v{o+4}, v{s.EPT}, s[{rWS}:{rWS+3}], s39 offen sc1\ns_mov_b64 exec, -1')
            if t == 0: s(f's_add_u32 s38, s38, {2*18*1024}\ns_add_u32 s39, s39, {2*18*1024}')
        s.lds_add(3, T, cD-CNT)
        s.stamp(8)
        s.last_arriver_flag(3, cC-CNT, 4, f's_lshl_b32 s13, s{sQB}, 3\ns_add_u32 s13, s13, s{sHG}\ns_add_u32 s13, s13, {FO}', 10)
        s.stamp(9)
        s.flush_stamps(13, 10)
        s('s_endpgm')

    def gemm(s, X, W, ACC, addr_of, pre_pos=None):
        def rd(ks, n):
            i, kk = ks//2, ks % 2
            if kk == 0 and n == 0 and pre_pos: pre_pos(i)
            v, b = addr_of(i); w = W[ks % 2]
            for e in range(2):
                s(f'ds_read_b64_tr_b16 v[{w+4*n+2*e}:{w+4*n+2*e+1}], v{v} offset:{b+kk*4608+n*32+e*144}')
        for n in range(5): rd(0, n)
        for ks in range(18):
            yield ks
            for n in range(5):
                s(f's_waitcnt lgkmcnt({8 if ks+1 < 18 else 8-2*n})')
                w = W[ks % 2]+4*n; c = f'v[{ACC+4*n}:{ACC+4*n+3}]'
                s(f'v_mfma_f32_16x16x32_bf16 {c}, v[{w}:{w+3}], v[{X+4*ks}:{X+4*ks+3}], {c if ks else 0}')
                if ks+1 < 18: rd(ks+1, n)

    def rowcalc(s, vs, vd, vt):
        s(f'v_mad_i32_i24 v{vd}, v{vs}, s35, 0\nv_add_u32 v{vd}, s33, v{vd}\nv_mov_b32 v{vt}, s34\nv_cmp_eq_u32 vcc, 0, v{vs}\nv_cndmask_b32 v{vd}, v{vd}, v{vt}, vcc')

    def staged(s, nks, sA, sK, amask, swap, poll, DA):
        VB, RD, AF, BF, L16 = s.VB, s.RD, 8, 40, 6
        nu = -(-nks//4)
        def dma(u):
            for m in range(4):
                s(f's_add_u32 m0, s53, {(u%2)*4096+m*1024}')
                if m % 2 == 0: s(f's_add_u32 s12, s{sK} , {128*u}' if m else f's_mov_b32 s12, {128*u}')
                s(f'buffer_load_dwordx4 v{VB+(m&1)}, s[{rB}:{rB+3}], s12 offen lds')
        def lda(u):
            n = min(4, nks-4*u)
            if amask: s(f's_mov_b64 exec, {amask}')
            for k in range(n):
                s(f'buffer_load_dwordx4 v[{AF+16*(u%2)+4*k}:{AF+16*(u%2)+4*k+3}], v{L16}, s[{rWS}:{rWS+3}], s{sA} offen offset:{1024*k} sc1')
            if amask: s('s_mov_b64 exec, -1')
            s(f's_add_u32 s{sA}, s{sA}, 4096')
            return n
        dma(0); dma(1)
        poll()
        lda(0); n1 = lda(1)
        later = n1
        for u in range(nu):
            n = min(4, nks-4*u)
            s(f's_waitcnt vmcnt({later})')
            for k in range(n): s(f'ds_read_b128 v[{BF+4*k}:{BF+4*k+3}], v{RD+k} offset:{(u%2)*4096}')
            for k in range(n):
                s(f's_waitcnt lgkmcnt({n-1-k})')
                a = f'v[{AF+16*(u%2)+4*k}:{AF+16*(u%2)+4*k+3}]'; b = f'v[{BF+4*k}:{BF+4*k+3}]'
                s(f'v_mfma_f32_32x32x16_bf16 v[{DA}:{DA+15}], {a}, {b}, {f"v[{DA}:{DA+15}]" if 4*u+k else 0}')
            later = 0
            if u+2 < nu:
                dma(u+2); later = 4 + lda(u+2)

    def helper(s):
        X = 8; FR = 80; W = [80, 100]; ACC = 120; KACC = 152; GACC = 152
        ROW, PAT, WOA, WOB, T = 156, 157, 158, 161, 164
        s('Lhelper:')
        s('s_setprio 3\ns_sub_u32 s10, s3, 8           ; j')
        s.srd(rA, pX, 2048*1152)
        s('s_movk_i32 s14, 1024\ns_cmp_eq_u32 s10, 1\ns_cselect_b32 s33, 2048, s14\ns_cselect_b32 s13, 1536, s14\ns_cmp_eq_u32 s10, 0\ns_cselect_b32 s33, 0, s33\ns_cselect_b32 s13, 0, s13\ns_cmp_eq_u32 s10, 3\ns_cselect_b32 s13, 512, s13')
        s('s_mov_b64 s[26:27], s[34:35]')
        pWO2 = 26; GC = [16, 17, 36]
        s('s_mov_b32 s34, s13\ns_add_u32 s14, s10, 1\ns_and_b32 s14, s14, 2\ns_sub_i32 s35, 1, s14')
        s(f's_lshl_b32 s32, s{sQB}, 4\nv_lshrrev_b32 v4, 3, v{LANE}\nv_add_u32 v4, s32, v4\nv_lshrrev_b32 v5, 4, v{LANE}\nv_xor_b32 v6, v5, v{LANE}\nv_and_b32 v6, 7, v6')
        s.rowcalc(4, 7, T)
        s(f'v_mul_u32_u24 v{T}, 1152, v7\nv_lshl_add_u32 v{T}, v6, 4, v{T}         ; m=0')
        s(f's_mul_i32 s12, s35, {8*1152}\nv_mad_i32_i24 v7, v4, s35, 0\nv_add_u32 v7, s33, v7\nv_mul_u32_u24 v7, 1152, v7\nv_add_u32 v7, s12, v7\nv_xor_b32 v6, 4, v6\nv_lshl_add_u32 v{T+1}, v6, 4, v7      ; m=1')
        s(f's_mov_b32 s57, s{sROT}\ns_lshl_b32 s58, s10, 11')
        for i in range(9):
            s('s_lshl_b32 s12, s57, 7')
            for m in range(2):
                s(f's_add_u32 m0, s58, {XL[i]+1024*m}\nbuffer_load_dwordx4 v{T+m}, s[{rA}:{rA+3}], s12 offen lds')
            if i < 8: s.next_rb(57)
        s(f'v_and_b32 v4, 15, v{LANE}\nv_add_u32 v6, s32, v4')
        s.rowcalc(6, ROW, T)
        s(f'v_lshrrev_b32 v{T}, 2, v4\nv_lshlrev_b32 v{T}, 1, v{T}\nv_lshl_add_u32 v{T}, v5, 3, v{T}\nv_mul_u32_u24 v{T}, 144, v{T}\nv_and_b32 v{T+1}, 3, v4\nv_lshl_add_u32 v{PAT}, v{T+1}, 3, v{T}')
        s(f's_add_u32 s61, s10, 4\ns_mul_i32 s60, s{sHG}, 144')
        for k, cls in enumerate(('s10', 's61', '8')):
            s.piece_decode(cls, T, T+1, T+2)
            s(f'v_lshl_add_u32 v{T+1}, v{T+1}, 4, s60')
            s(f'v_lshrrev_b32 v{T+2}, 4, v{T}\nv_mul_u32_u24 v{T+2}, 18, v{T+2}\nv_and_b32 v{T+3}, 3, v{T}\nv_add_u32 v{T+2}, v{T+2}, v{T+3}')
            s(f'v_bfe_u32 v{T+3}, v{T}, 2, 1\nv_lshl_add_u32 v{T+2}, v{T+3}, 3, v{T+2}\nv_bfe_u32 v{T+3}, v{T}, 3, 1\nv_lshl_add_u32 v{T+2}, v{T+3}, 2, v{T+2}')
            s(f'v_mul_u32_u24 v{T+2}, 1152, v{T+2}\nv_add_u32 v{WOA+k}, v{T+2}, v{T+1}')
            s(f'v_lshrrev_b32 v{T+2}, 1, v{T}\nv_mul_u32_u24 v{T+2}, 18, v{T+2}\nv_and_b32 v{T+3}, 1, v{T}\nv_add3_u32 v{T+2}, v{T+2}, v{T+3}, 16')
            s(f'v_mul_u32_u24 v{T+2}, 1152, v{T+2}\nv_add_u32 v{WOB+k}, v{T+2}, v{T+1}')
        s(f'v_lshrrev_b32 v6, 1, v4\nv_xor_b32 v6, v6, v5\nv_lshlrev_b32 v6, 4, v6\nv_lshl_add_u32 v6, v4, 7, v6\nv_add_u32 v6, s58, v6\nv_xor_b32 v7, 64, v6')
        def xpass(mf):
            cur = 0
            for i in range(9):
                if XL[i] - cur > 65535 or XL[i] < cur:
                    nb = XL[i]
                    s(f'v_add_u32 v6, {(nb-cur) & 0xffffffff}, v6\nv_add_u32 v7, {(nb-cur) & 0xffffffff}, v7'); cur = nb
                s(f's_waitcnt vmcnt({16-2*i})')
                if i == 8: s.lds_add(3, T+2, cXL-CNT)
                for kk in range(2): s(f'ds_read_b128 v[{X+8*i+4*kk}:{X+8*i+4*kk+3}], v{6+kk} offset:{XL[i]-cur}')
                if mf and i:
                    s('s_waitcnt lgkmcnt(2)'); mf(2*i-2); mf(2*i-1)
            s('s_waitcnt lgkmcnt(0)')
            if mf: mf(16); mf(17)
            s.lds_add(3, T+2, cXR-CNT)
        s.lds_spin(3, cE-CNT, 2, T, sleep=0)
        s.stamp(1)
        s(f's_cmp_ge_u32 s{sHG}, 6\ns_cbranch_scc0 Ldokv')
        xpass(None)
        s('s_branch Lnokv\nLdokv:')
        s(f'v_lshrrev_b32 v{T}, 2, v4\nv_lshl_add_u32 v{T}, v5, 3, v{T}\nv_lshlrev_b32 v{T}, 4, v{T}\nv_and_b32 v{T+1}, 1, v4\nv_lshl_add_u32 v{T}, v{T+1}, 3, v{T}')
        s(f's_mov_b32 s57, s{sROT}')
        for i in range(9):
            s(f's_lshl_b32 s12, s57, 10\ns_add_u32 s12, s12, {EXL}\nv_add_u32 v{T+1}, s12, v{T}')
            for kk in range(2):
                for e in range(2):
                    r = FR+8*i+4*kk+2*e
                    s(f'ds_read_b64_tr_b16 v[{r}:{r+1}], v{T+1} offset:{kk*512+e*64}')
            if i < 8: s.next_rb(57)
        s(f's_lshr_b32 s12, s{sQB}, 1\ns_mul_i32 s56, s12, {CH}\ns_add_u32 s56, s56, {KV0}\ns_and_b32 s13, s{sQB}, 1')
        s(f's_cmp_ge_u32 s{sHG}, 3\ns_cbranch_scc1 Lvpass')
        kc = f'v[{KACC}:{KACC+3}]'
        s(f's_lshl_b32 s13, s13, 1\ns_lshr_b32 s14, s10, 1\ns_add_u32 s59, s13, s14        ; kb')
        s(f's_and_b32 s14, s10, 1\ns_lshl_b32 s14, s14, 4\nv_add_lshl_u32 v{T}, v4, s14, 4      ; row*16')
        xpass(lambda ks: s(f'v_mfma_f32_16x16x32_bf16 {kc}, v[{FR+4*ks}:{FR+4*ks+3}], v[{X+4*ks}:{X+4*ks+3}], {kc if ks else 0}'))
        s(f's_cmp_eq_u32 s{sHG}, 2\ns_cbranch_scc1 Lkb')
        s(f's_lshl_b32 s13, s59, 10\ns_lshl_b32 s14, s{sHG}, 9\ns_add_u32 s13, s13, s14\ns_add_u32 s56, s56, s13\nv_lshl_add_u32 v{T}, v5, 3, v{T}')
        s(f'v_cvt_pk_bf16_f32 v{KACC}, v{KACC}, v{KACC+1}\nv_cvt_pk_bf16_f32 v{KACC+1}, v{KACC+2}, v{KACC+3}')
        s(f's_mov_b32 exec_hi, 0\nbuffer_store_dwordx2 v[{KACC}:{KACC+1}], v{T}, s[{rWS}:{rWS+3}], s56 offen sc1\ns_mov_b64 exec, -1\ns_branch Lnokv')
        s(f'Lkb:\ns_nop 3\ns_lshl_b32 s13, s59, 2\ns_add_u32 s56, s56, s13\ns_add_u32 s56, s56, 8704\nv_cvt_pk_bf16_f32 v{KACC}, v{KACC}, v{KACC+1}')
        s(f's_mov_b64 exec, 0xffff\nbuffer_store_dword v{KACC}, v{T}, s[{rWS}:{rWS+3}], s56 offen sc1\ns_mov_b64 exec, -1\ns_branch Lnokv')
        s('Lvpass:')
        s(f's_lshl_b32 s13, s13, 2\ns_add_u32 s13, s13, s10\ns_mul_i32 s13, s13, 576\ns_sub_u32 s14, s{sHG}, 3\ns_lshl_b32 s14, s14, 7\ns_add_u32 s13, s13, s14\ns_add_u32 s56, s56, s13\ns_add_u32 s56, s56, 4096')
        s(f'v_lshrrev_b32 v{T}, 1, v5\nv_mul_u32_u24 v{T}, 288, v{T}\nv_lshl_add_u32 v{T}, v4, 4, v{T}\nv_and_b32 v{T+1}, 1, v5\nv_lshl_add_u32 v{T}, v{T+1}, 3, v{T}')
        s(f's_cmp_eq_u32 s{sHG}, 5\ns_cselect_b32 s12, 2, 8\nv_cmp_gt_u32 s[60:61], s12, v4')
        xpass(lambda ks: s(f'v_mfma_f32_16x16x32_bf16 {kc}, v[{X+4*ks}:{X+4*ks+3}], v[{FR+4*ks}:{FR+4*ks+3}], {kc if ks else 0}'))
        for i in range(4): s(f'v_mul_f32 v{KACC+i}, {fbits(2.0**24)}, v{KACC+i}')
        s(f'v_cvt_pk_bf16_f32 v{KACC}, v{KACC}, v{KACC+1}\nv_cvt_pk_bf16_f32 v{KACC+1}, v{KACC+2}, v{KACC+3}')
        s(f's_mov_b64 exec, s[60:61]\nbuffer_store_dwordx2 v[{KACC}:{KACC+1}], v{T}, s[{rWS}:{rWS+3}], s56 offen sc1\ns_mov_b64 exec, -1')
        s('Lnokv:')
        s.stamp(2)
        s(f'v_lshlrev_b32 v{T}, 4, v5\ns_mov_b32 s57, s{sROT}')
        for i in range(9):
            s(f's_lshl_b32 s12, s57, 7\ns_add_u32 s12, s12, {GWL}\nv_add_u32 v{T+1}, s12, v{T}')
            for kk in range(2):
                r = FR+8*i+4*kk
                s(f'ds_read_b128 v[{r}:{r+3}], v{T+1} offset:{kk*64}')
            if i < 8: s.next_rb(57)
        s.get_epoch(2)
        s('s_waitcnt lgkmcnt(0)')
        for ks in range(18):
            s(f'v_mfma_f32_16x16x32_bf16 v[{GACC}:{GACC+3}], v[{FR+4*ks}:{FR+4*ks+3}], v[{X+4*ks}:{X+4*ks+3}], {f"v[{GACC}:{GACC+3}]" if ks else 0}')
        SW, L3, RD, P0, P1, L16 = 140, 142, 144, 148, 149, 6
        s.RD = RD; s.VB = 150
        s(f's_add_u32 s53, s10, 13\ns_mul_i32 s53, s53, {CH}')
        s(f'v_xor_b32 v{SW}, v5, v{LANE}\nv_and_b32 v{SW}, 7, v{SW}\nv_lshlrev_b32 v{SW}, 4, v{SW}\nv_xor_b32 v{SW+1}, 64, v{SW}\nv_lshrrev_b32 v{L3}, 3, v{LANE}')
        s(f'v_and_b32 v{T}, 31, v{LANE}\nv_bfe_u32 v{T+1}, v{LANE}, 1, 3\nv_lshrrev_b32 v{T+2}, 5, v{LANE}\nv_xor_b32 v{T+1}, v{T+1}, v{T+2}\nv_lshlrev_b32 v{T+1}, 4, v{T+1}\nv_lshl_add_u32 v{T+1}, v{T}, 7, v{T+1}')
        for k in range(4): s(f'v_xor_b32 v{RD+k}, {32*k}, v{T+1}\nv_add_u32 v{RD+k}, s53, v{RD+k}')
        s(f'v_add_u32 v{P0}, {3*CH}, v{PAT}\nv_add_u32 v{P1}, {11*CH}, v{PAT}\nv_lshlrev_b32 v{L16}, 4, v{LANE}')
        s(f's_lshl_b32 s12, s10, 4\nv_add_u32 v7, s12, v4\nv_mul_u32_u24 v7, 160, v7\nv_lshl_add_u32 v7, v5, 3, v7\nv_add_u32 v7, {QXL}, v7')
        s('s_add_u32 s29, s10, 3\ns_cmp_eq_u32 s10, 3\ns_cselect_b32 s29, 11, s29\ns_add_u32 s30, s10, 6\ns_cmp_eq_u32 s10, 2\ns_cselect_b32 s30, 12, s30\ns_add_u32 s31, s10, 13')
        s('s_cmp_eq_u32 s10, 3\ns_cselect_b32 s30, s29, s30\ns_cselect_b32 s31, s29, s31')
        for k in range(3):
            s(f's_add_u32 s12, s{29+k}, s{sCROT}\ns_and_b32 s12, s12, 7\ns_and_b32 s13, s{29+k}, 8\ns_add_u32 s{GC[k]}, s12, s13')
            s(f's_sub_u32 s12, s{GC[k]}, {k}\ns_mul_i32 s12, s12, {12*128}\ns_add_u32 s12, s12, {FLAG0+FK*128}')
            if k == 0: s('v_mov_b32 v143, s12')
            else: s(f'v_mov_b32 v{T}, s12\nv_cmp_le_u32 vcc, {12*k}, v{LANE}\nv_cndmask_b32 v143, v143, v{T}, vcc')
        s(f'v_lshl_add_u32 v143, v{LANE}, 7, v143')
        s(f's_cmp_ge_u32 s{sHG}, 6\ns_cbranch_scc1 Lnofk')
        s.last_arriver_flag(3, cKV-CNT, 4, f's_mul_i32 s13, s{sQB}, 6\ns_add_u32 s13, s13, s{sHG}\ns_add_u32 s13, s13, {FK}', T)
        s('Lnofk:')
        s.stamp(3)
        s('s_mov_b32 s58, 0')
        def pre(i):
            D = s.lab('Lpg'); L = s.lab('Lpl')
            s(f's_cmp_ge_u32 s58, {i+1}\ns_cbranch_scc1 {D}\ns_mov_b32 s15, {SPIN}\n{L}:')
            s(f'ds_read_b128 v[{T}:{T+3}], v3 offset:{cPR-CNT}\ns_waitcnt lgkmcnt(0)\nv_min3_u32 v{T}, v{T}, v{T+1}, v{T+2}\nv_min_u32 v{T}, v{T}, v{T+3}\nv_readfirstlane_b32 s58, v{T}')
            s(f's_cmp_ge_u32 s58, {i+1}\ns_cbranch_scc1 {D}\ns_sub_u32 s15, s15, 1\ns_cbranch_scc0 {L}\n{D}:')
        for ks in s.gemm(X, W, ACC, lambda i: (P0, i*CH) if i < 5 else (P1, (i-5)*CH), pre): pass
        for n in range(5):
            a = ACC+4*n
            for i in range(4): s(f'v_mul_f32 v{a+i}, {fbits(CSCALE)}, v{a+i}')
            s(f'v_cvt_pk_bf16_f32 v{a}, v{a}, v{a+1}\nv_cvt_pk_bf16_f32 v{a+1}, v{a+2}, v{a+3}\nds_write_b64 v7, v[{a}:{a+1}] offset:{32*n}')
        s('s_waitcnt lgkmcnt(0)')
        s.stamp(4)
        s('s_barrier                 ; B5')
        s('s_bfm_b64 s[90:91], 36, 0')
        s.poll([143], T, mask='s[90:91]', sleep=2)
        for k in range(2):
            if k == 1: s('s_cmp_eq_u32 s10, 3\ns_cbranch_scc1 Lkvdone')
            s(f's_mul_i32 s61, s{29+k}, {CH}')
            s.kv_chunk_dma(GC[k], 61, L16)
        s('Lkvdone:')
        s('s_lshl_b32 s12, s10, 5\ns_lshr_b32 s13, s2, 3\ns_add_u32 s54, s12, s13        ; lambda')
        s('s_mul_i32 s12, s54, 241\ns_lshr_b32 s12, s12, 12        ; /17\ns_mul_i32 s13, s12, 17\ns_sub_u32 s55, s54, s13       ; sigma/theta')
        s('s_and_b32 s13, s2, 1\ns_mul_i32 s13, s13, 5\ns_add_u32 s60, s12, s13       ; eps\ns_bfe_u32 s61, s2, 0x20001       ; type')
        s('s_mul_i32 s59, s61, 10\ns_add_u32 s59, s59, s60      ; gamma')
        s('s_cmp_lt_u32 s54, 85\ns_cbranch_scc1 Ljob')
        s('s_waitcnt vmcnt(0)')
        s.lds_add(3, T, cK2-CNT)
        s('s_cmp_eq_u32 s10, 3\ns_cbranch_scc0 Lnojob')
        s.lds_add(3, T, cK3-CNT)
        s.srd(rB, pDBG, 256)
        s(f's_mov_b64 exec, 1\nv_mov_b32 v{T}, 1\nbuffer_atomic_add v{T}, off, s[{rB}:{rB+3}], 0 sc0 sc1\ns_waitcnt vmcnt(0)\nv_readfirstlane_b32 s12, v{T}')
        s(f's_cmp_eq_u32 s12, 255\ns_cbranch_scc0 Lnoep\nv_mov_b32 v{T}, s{sE}\nbuffer_store_dword v{T}, off, s[{rWS}:{rWS+3}], 0 sc1\nLnoep:\ns_mov_b64 exec, -1\ns_branch Lnolate')
        s('Ljob:')
        DA = 56; VB = s.VB
        s('s_cmp_lt_u32 s61, 2'); s.srd_sel(rB, pCD, pSD, 576*1152)
        s(f's_lshl_b32 s12, s60, 5\nv_add_u32 v{T}, s12, v{L3}\nv_mul_u32_u24 v{T}, 1152, v{T}\nv_add_u32 v{VB}, v{T}, v{SW}\nv_add3_u32 v{VB+1}, v{T}, v{SW+1}, s12')
        s(f's_sub_u32 s12, {8*1152}, s12\nv_add_u32 v{VB+1}, s12, v{VB+1}\ns_mov_b32 s52, {16*1152}')
        s(f's_mul_i32 s12, s61, 17\ns_add_u32 s12, s12, s55\ns_mul_i32 s56, s12, {19*1024}\ns_add_u32 s56, s56, {F0}')
        s(f's_cmp_eq_u32 s55, 16\ns_cselect_b32 s12, 0, s55\ns_cselect_b32 s13, 8, 16\ns_cselect_b32 s28, 1, -1\ns_bfm_b64 s[90:91], s13, 0\ns_mov_b32 s29, s28')
        s(f's_lshl_b32 s12, s12, 11\ns_add_u32 s12, s12, {FLAG0+FF*128}\nv_lshl_add_u32 v143, v{LANE}, 7, s12')
        s('s_cmp_eq_u32 s55, 16\ns_cbranch_scc0 Lnozero')
        for i in range(32): s(f'v_mov_b32 v{8+i}, 0')
        s('Lnozero:')
        def poll1():
            s('s_waitcnt vmcnt(8)'); s.lds_add(3, T, cK2-CNT); s.stamp(5)
            s.poll([143], T, mask='s[90:91]', sleep=4)
        s.staged(19, 56, 52, 's[28:29]', False, poll1, DA)
        s(f's_mul_i32 s58, s59, {34*1024}\ns_add_u32 s58, s58, {U0}\ns_lshl_b32 s12, s55, 11\ns_add_u32 s56, s58, s12')
        s('s_cmp_lt_u32 s61, 2'); s.srd_sel(rB, pCS, pSS, 2048*4096)
        s(f's_lshl_b32 s12, s55, 6\ns_and_b32 s13, s61, 1\ns_add_u32 s54, s12, s13\nv_lshl_add_u32 v{T}, v{L3}, 1, s54\nv_lshl_add_u32 v{VB}, v{T}, 12, v{SW}\nv_lshl_add_u32 v{VB+1}, v{T}, 12, v{SW+1}')
        s(f'v_add_u32 v{VB+1}, {16*4096}, v{VB+1}\ns_mov_b32 s52, {32*4096}')
        for q in range(8): s(f'v_cvt_pk_bf16_f32 v{DA+q}, v{DA+2*q}, v{DA+2*q+1}')
        for a in range(2):
            s(f'v_permlane32_swap_b32 v{DA+4*a}, v{DA+4*a+2}\nv_permlane32_swap_b32 v{DA+4*a+1}, v{DA+4*a+3}')
            s(f'buffer_store_dwordx4 v[{DA+4*a}:{DA+4*a+3}], v{L16}, s[{rWS}:{rWS+3}], s56 offen offset:{a*1024} sc1')
        s(f's_mul_i32 s57, s59, 17\ns_add_u32 s12, s57, {FU}\ns_lshl_b32 s12, s12, 7\ns_add_u32 s12, s12, {FLAG0}\nv_lshl_add_u32 v143, v{LANE}, 7, s12')
        def poll2():
            s(f's_waitcnt vmcnt(8)\ns_add_u32 s13, s57, s55\ns_add_u32 s13, s13, {FU}')
            s.set_flag(13, T); s.stamp(6)
            s.poll([143], T, mask='0x1ffff', sleep=4)
        s.staged(33, 58, 52, None, False, poll2, DA)
        s.kv_chunk_dma(GC[2], 53, L16)
        s(f's_bfe_u32 s12, s2, 0x10002\ns_mul_i32 s56, s12, {YK}\ns_mul_i32 s12, s60, {8*YQ}\ns_add_u32 s56, s56, s12\ns_add_u32 s56, s56, {Y0}')
        s(f'v_and_b32 v{T}, 31, v{LANE}\nv_lshl_add_u32 v{T}, v{T}, 1, s54\nv_lshrrev_b32 v{T+1}, 5, v{LANE}\nv_mul_u32_u24 v{T+1}, {YQ}, v{T+1}\nv_lshl_add_u32 v{T}, v{T}, 3, v{T+1}')
        for jj in range(4):
            d = DA+4*jj
            s(f'v_cvt_pk_bf16_f32 v{d}, v{d}, v{d+1}\nv_cvt_pk_bf16_f32 v{d+1}, v{d+2}, v{d+3}')
            s(f'buffer_store_dwordx2 v[{d}:{d+1}], v{T}, s[{rWS}:{rWS+3}], s56 offen sc1')
            if jj < 3: s(f's_add_u32 s56, s56, {2*YQ}')
        s(f's_waitcnt vmcnt(0)\ns_add_u32 s13, s57, s55\ns_add_u32 s13, s13, {FY}')
        s.set_flag(13, T)
        s.lds_add(3, T, cK3-CNT)
        s('s_branch Lnolate\nLnojob:')
        s.kv_chunk_dma(GC[2], 53, L16)
        s('s_waitcnt vmcnt(0)')
        s.lds_add(3, T, cK3-CNT)
        s('Lnolate:')
        s.stamp(7)
        s.srd(rA, pWO2, 576*1152)
        s.lds_spin(3, cP4-CNT, 4, T, sleep=8)
        s.lds_spin(3, cP2+4-CNT, 4, T, sleep=8)
        s('s_lshl_b32 s58, s10, 10\ns_add_u32 s59, s58, 4096')
        for rb in range(9):
            base = CH*(rb if rb < 5 else (rb+3 if rb < 8 else 16))
            v = WOA if rb < 8 else WOB
            so = rb*72*1152 if rb < 8 else 0
            s(f's_mov_b32 s55, {so}')
            s(f's_add_u32 m0, s58, {base}\nbuffer_load_dwordx4 v{v}, s[{rA}:{rA+3}], s55 offen lds')
            s(f's_add_u32 m0, s59, {base}\nbuffer_load_dwordx4 v{v+1}, s[{rA}:{rA+3}], s55 offen lds')
            S = s.lab('Lw8')
            s(f's_cmp_eq_u32 s10, {rb%4}\ns_cbranch_scc0 {S}\ns_mov_b32 m0, {base+8192}\nbuffer_load_dwordx4 v{v+2}, s[{rA}:{rA+3}], s55 offen lds\n{S}:')
        s.stamp(8)
        TP = 143; YR = 84; YX = 104
        s(f'v_sub_u32 v{T}, 2048, v{ROW}\nv_min_u32 v{TP}, v{T}, v{ROW}')
        s(f's_mul_i32 s54, s{sHG}, 72\ns_sub_u32 s12, 505, s54\ns_cmp_lt_u32 s{sHG}, 4\ns_cselect_b32 s12, s54, s12      ; emin')
        s(f's_add_u32 s13, s12, 71\ns_lshr_b32 s12, s12, 5\ns_lshr_b32 s13, s13, 5\nv_add_u32 v8, s12, v5\nv_min_u32 v8, s13, v8        ; eps')
        s(f'v_and_b32 v9, 1, v{TP}\nv_mad_u32_u24 v8, v9, 10, v8\nv_mul_u32_u24 v8, 17, v8\nv_lshrrev_b32 v9, 6, v{TP}\nv_add_lshl_u32 v8, v8, v9, 7')
        s(f'v_add_u32 v8, {FLAG0+FY*128}, v8\nv_add_u32 v9, {20*17*128}, v8')
        s(f's_mul_i32 s12, s{sHG}, 18\ns_sub_u32 s13, 143, s12\ns_cmp_lt_u32 s{sHG}, 4\ns_cselect_b32 s12, s12, s13\ns_cselect_b32 s13, 1, -1\ns_mul_i32 s12, s12, {YQ}\ns_add_u32 s56, s12, {Y0}\ns_mul_i32 s57, s13, {YQ}\ns_lshl_b32 s58, s57, 2')
        s(f'v_mul_i32_i24 v10, s57, v5\nv_lshl_add_u32 v10, v{TP}, 3, v10\nv_add_u32 v10, s56, v10\nv_add_u32 v11, {YK}, v10\ns_mov_b32 s59, {YQ}')
        s.poll([8, 9], T, sleep=8)
        for n in range(5):
            s(f'buffer_load_dwordx2 v[{YR+2*n}:{YR+2*n+1}], v10, s[{rWS}:{rWS+3}], 0 offen sc1')
            s(f'buffer_load_dwordx2 v[{YR+10+2*n}:{YR+10+2*n+1}], v11, s[{rWS}:{rWS+3}], 0 offen sc1')
            s(f'buffer_load_ushort v{YX+n}, v10, s[{rWS}:{rWS+3}], s59 offen sc1')
            s(f'buffer_load_ushort v{YX+5+n}, v11, s[{rWS}:{rWS+3}], s59 offen sc1')
            if n < 4: s('v_add_u32 v10, s58, v10\nv_add_u32 v11, s58, v11')
        s('s_waitcnt vmcnt(0)')
        s.lds_add(3, T, cW-CNT)
        s.stamp(9)
        s.lds_spin(3, cD-CNT, 4, T, sleep=2)
        s.stamp(10)
        g, omg, sg = GACC, GACC+1, GACC+2
        s(f'v_mul_f32 v{g}, {fbits(-math.log2(math.e))}, v{g}\nv_exp_f32 v{g}, v{g}\nv_add_f32 v{omg}, 1.0, v{g}\nv_rcp_f32 v{g}, v{omg}\nv_sub_f32 v{omg}, 1.0, v{g}')
        s(f'v_mov_b32 v{T}, 1024\nv_cmp_gt_u32 vcc, v{ROW}, v{T}\ns_cmp_lt_u32 s{sHG}, 4\ns_cselect_b32 s12, 0, -1\ns_mov_b32 s13, s12\ns_xor_b64 vcc, vcc, s[12:13]\nv_cndmask_b32 v{sg}, -1.0, 1.0, vcc       ; -sgn')
        GY = 124
        s(f's_cmp_lt_u32 s{sHG}, 4\ns_cbranch_scc0 Lgyrev')
        for rev in (0, 1):
            if rev: s('Lgyrev:')
            for n in range(5):
                for i in range(4):
                    for kind, d in ((0, T), (1, T+1)):
                        if rev and i == 0: s(f'v_lshlrev_b32 v{d}, 16, v{YX+5*kind+n}'); continue
                        p = 4-i if rev else i
                        r = YR+10*kind+2*n+p//2
                        s(f'v_and_b32 v{d}, 0xffff0000, v{r}' if p & 1 else f'v_lshlrev_b32 v{d}, 16, v{r}')
                    s(f'v_fmac_f32 v{T}, v{sg}, v{T+1}\nv_mul_f32 v{GY+4*n+i}, v{g}, v{T}')
            if not rev: s('s_branch Lgydone')
        s('Lgydone:')
        ACC = 144
        P0, P1, P2, OM = 120, 121, 122, 123
        OW, OG, OR = 7, 164, 0
        s(f'v_mov_b32 v{P0}, v{PAT}\nv_add_u32 v{P1}, {8*CH}, v{PAT}\nv_add_u32 v{P2}, {16*CH}, v{PAT}\nv_mov_b32 v{OM}, v{omg}')
        s(f's_mul_i32 s58, s10, 2560\ns_add_u32 s58, s58, {OXL}\nv_mul_u32_u24 v{OW}, 160, v4\nv_lshl_add_u32 v{OW}, v5, 3, v{OW}\nv_add_u32 v{OW}, s58, v{OW}\ns_mul_i32 s56, s{sHG}, 144')
        ORS = (0, 2, 167)
        for r in range(3):
            s(f'v_add_u32 v80, {64*r}, v{LANE}\nv_mul_u32_u24 v81, 7282, v80\nv_lshrrev_b32 v81, 16, v81\nv_mul_u32_u24 v82, 9, v81\nv_sub_u32 v82, v80, v82\nv_lshlrev_b32 v82, 4, v82')
            s(f'v_mul_u32_u24 v83, 160, v81\nv_add3_u32 v{ORS[r]}, v83, v82, s58\nv_add_u32 v81, s32, v81')
            s.rowcalc(81, 83, 80)
            s(f'v_mul_u32_u24 v83, 1152, v83\nv_add3_u32 v{OG+r}, v83, v82, s56')
        s(f's_lshl_b32 s12, s{sQB}, 10\ns_add_u32 s12, s12, {FLAG0+FO*128}\nv_lshl_add_u32 v4, v{LANE}, 7, s12')
        s.lds_spin(3, cW-CNT, 4, 80, sleep=0)
        s.srd(rA, pOUT, 2048*1152)
        s(f's_lshl_b32 s56, s{sQB}, 2\ns_add_u32 s56, s56, s10\ns_mul_i32 s56, s56, {18*1024}\ns_add_u32 s56, s56, {O0}')
        s.poll([4], 80, mask='0xff', sleep=0)
        s.stamp(11)
        for ks in range(18):
            if ks % 4 == 0 and ks: s('s_add_u32 s56, s56, 4096')
            s(f'buffer_load_dwordx4 v[{X+4*ks}:{X+4*ks+3}], v{L16}, s[{rWS}:{rWS+3}], s56 offen offset:{1024*(ks%4)} sc1')
        def addr(i):
            if i < 5: return (P0, i*CH)
            if i < 8: return (P1, (i-5)*CH)
            return (P2, 0)
        for ks in s.gemm(X, W, ACC, addr): s(f's_waitcnt vmcnt({17-ks})')
        for n in range(5):
            a = ACC+4*n
            for i in range(4): s(f'v_fma_f32 v{a+i}, v{a+i}, v{OM}, v{GY+4*n+i}')
            s(f'v_cvt_pk_bf16_f32 v{a}, v{a}, v{a+1}\nv_cvt_pk_bf16_f32 v{a+1}, v{a+2}, v{a+3}\nds_write_b64 v{OW}, v[{a}:{a+1}] offset:{32*n}')
        for r in range(3):
            if r == 2: s('s_mov_b64 exec, 0xffff')
            s(f'ds_read_b128 v[{80+4*r}:{83+4*r}], v{ORS[r]}')
        s('s_mov_b64 exec, -1')
        for r in range(3):
            if r == 2: s('s_mov_b64 exec, 0xffff')
            s(f's_waitcnt lgkmcnt({2-r})\nbuffer_store_dwordx4 v[{80+4*r}:{83+4*r}], v{OG+r}, s[{rA}:{rA+3}], 0 offen')
        s('s_mov_b64 exec, -1')
        s.stamp(12)
        s.flush_stamps(13, 2)
        s('Lend:\ns_endpgm')

    def build(s):
        s.entry(); s.role_loader(); s.role0(); s.role1(); s.attention(); s.helper()
        hdr = open('cdna_kernels/%s.s.ref' % NAME).read().split('; Override launch')[0]
        out = hdr + f'; @launch grid=(256,1,1) block=(768,1,1) lds={LDS_BYTES}\n'
        out += f'.amdgcn_target "amdgcn-amd-amdhsa--gfx950"\n.text\n.globl {NAME}_kernel\n.p2align 8\n.type {NAME}_kernel,@function\n{NAME}_kernel:\n'
        out += s.e.text()
        out += f'''.section .rodata,"a"
.p2align 6
.amdhsa_kernel {NAME}_kernel
  .amdhsa_next_free_vgpr 168
  .amdhsa_next_free_sgpr 96
  .amdhsa_accum_offset 168
  .amdhsa_group_segment_fixed_size 0
  .amdhsa_kernarg_size 112
  .amdhsa_user_sgpr_count 2
  .amdhsa_user_sgpr_kernarg_segment_ptr 1
  .amdhsa_system_sgpr_workgroup_id_x 1
.end_amdhsa_kernel
'''
        return out
if __name__ == '__main__':
    diag = 'diag' in sys.argv
    g = G(diag, {a.split('=')[0]: (a.split('=')+['1'])[1] for a in sys.argv[2:]})
    txt = g.build()
    dst = sys.argv[1] if len(sys.argv) > 1 and sys.argv[1].endswith('.s') else f'cdna_kernels/{NAME}.s'
    open(dst, 'w').write(txt)
    print('written', dst, len(txt), 'bytes; loop pads:', len(g.loop_pads))
```

```python
import sys, struct, math
from emit import Em
NAME = 'gated_mix__spectral_fnet__grouped_kv_mqa__prompt'
def fbits(x): return '0x%08x' % struct.unpack('<I', struct.pack('<f', x))[0]
CSCALE = math.log2(math.e)/math.sqrt(18.0)
FLAG0 = 4096
FK, FF, FO, FU, FY = 0, 256, 512, 768, 1536
KV0 = 0x50000; O0 = 0x80000; F0 = 0x2C0000; U0 = 0x410000; Y0 = 0x570000; YK = 1088*640; ST0 = 0x6D0000
WS_USED = 0x700000
CH = 9216
EXL = 15*CH; QXL = 16*CH; CNT = QXL + 10240; GWL = CNT + 256; PART = 5*CH; OXL = 11*CH
WQS = [3, 4, 5, 6, 7, 11, 12, 13, 14]
XL = [13*CH, 14*CH, 0, 8192, 16384, 8*CH, 8*CH+8192, 8*CH+16384, 16*CH]
LDS_BYTES = 163840
cE, cKV, cF, cK1, cK2, cP2, cP4, cA, cD, cC, cW, cB, cPR, cXL, cXR = [CNT+x for x in (0, 4, 8, 12, 96, 24, 32, 40, 44, 48, 52, 64, 80, 56, 60)]
cK3 = cK2 + 4
cKS = CNT + 128; cGW = CNT + 108; cRL = CNT + 104; cRC = CNT + 112
WOT = GWL + 2048; RING = 13*CH
YQ = 1088*8
SPIN = 200000; GSPIN = 20000
SHIFT = 100.0
sQB, sHG, sE, sROT, sCROT = 4, 5, 6, 8, 9
pX, pCS, pSS, pCD, pSD, pWQ, pWK, pWV, pWO, pGW, pOUT, pDBG, pWS = 16, 18, 20, 22, 24, 28, 30, 32, 34, 36, 38, 40, 42
rWS, rA, rB = 44, 48, 92
LANE = 1

class G:
    def __init__(s, diag=False, opts=None):
        s.e = Em(); s.n = 0; s.diag = diag; s.o = opts or {}
    def __call__(s, t): s.e(t)
    def lab(s, p='L'): s.n += 1; return f'{p}_{s.n}'
    def srd(s, r, p, size):
        s(f's_mov_b32 s{r}, s{p}\ns_mov_b32 s{r+1}, s{p+1}\ns_mov_b32 s{r+2}, {size}\ns_mov_b32 s{r+3}, 0x20000')
    def srd_sel(s, r, pa, pb, size):
        s(f's_cselect_b32 s{r}, s{pa}, s{pb}\ns_cselect_b32 s{r+1}, s{pa+1}, s{pb+1}\ns_mov_b32 s{r+2}, {size}\ns_mov_b32 s{r+3}, 0x20000')
    def stamp(s, k):
        if s.diag: s(f's_memtime s[{64+2*k}:{65+2*k}]')
    def flush_stamps(s, n, vt):
        if not s.diag: return
        s('s_waitcnt lgkmcnt(0)\ns_mov_b64 exec, 1\ns_mov_b32 s61, s64')
        s(f's_mul_i32 s63, s2, 12\ns_add_u32 s63, s63, s3\ns_lshl_b32 s63, s63, 6\ns_add_u32 s63, s63, {ST0}')
        for k in range(n):
            s(f'v_mov_b32 v{vt}, s{64+2*k}\nbuffer_store_dword v{vt}, off, s[{rWS}:{rWS+3}], s63 offset:{4*k}')
        s(f's_memrealtime s[64:65]\ns_waitcnt lgkmcnt(0)\nv_mov_b32 v{vt}, s64\nbuffer_store_dword v{vt}, off, s[{rWS}:{rWS+3}], s63 offset:60')
        s(f'v_mov_b32 v{vt}, s62\nbuffer_store_dword v{vt}, off, s[{rWS}:{rWS+3}], s63 offset:56')
        if s.o.get('dbgout') and n == 13 and vt == 2:
            s.srd(rB, pDBG, 256)
            s(f'v_mov_b32 v{vt}, s64\nbuffer_atomic_umax v{vt}, off, s[{rB}:{rB+3}], 0 offset:8 sc1')
            s(f's_not_b32 s13, s62\nv_mov_b32 v{vt}, s13\nbuffer_atomic_umax v{vt}, off, s[{rB}:{rB+3}], 0 offset:12 sc1')
            s(f's_sub_u32 s13, s64, s62\nv_mov_b32 v{vt}, s13\nbuffer_atomic_umax v{vt}, off, s[{rB}:{rB+3}], 0 offset:4 sc1')
            s(f's_cmp_eq_u32 s2, 100\ns_cbranch_scc0 Ldbgx\ns_cmp_eq_u32 s3, 9\ns_cbranch_scc0 Ldbgx')
            for k in range(1, 13):
                s(f's_sub_u32 s13, s{64+2*k}, s92x\nv_mov_b32 v{vt}, s13\nbuffer_store_dword v{vt}, off, s[{rB}:{rB+3}], 0 offset:{12+4*k}'.replace('s92x', 's61'))
            s('Ldbgx:')
        s('s_mov_b64 exec, -1')
    def load_epoch(s):
        s(f'buffer_load_dword v2, off, s[{rWS}:{rWS+3}], 0')
    def get_epoch(s, vE):
        s(f'v_readfirstlane_b32 s{sE}, v{vE}\ns_mul_i32 s{sE}, s{sE}, 1664525\ns_add_u32 s{sE}, s{sE}, 1013904223\ns_not_b32 s{sE+1}, s{sE}')
    def poll(s, addrs, vt, mask=None, sleep=2, soffs=None):
        L, D = s.lab('Lpoll'), s.lab('Lpd')
        s(f's_mov_b32 s15, {GSPIN}')
        if mask is not None: s(f's_mov_b64 exec, {mask}')
        s(f'{L}:')
        for i, a in enumerate(addrs):
            s(f'buffer_load_dwordx2 v[{vt+2*i}:{vt+2*i+1}], v{a}, s[{rWS}:{rWS+3}], 0 offen sc1')
        s('s_waitcnt vmcnt(0)')
        s(f'v_cmp_ne_u64 vcc, s[{sE}:{sE+1}], v[{vt}:{vt+1}]')
        for i in range(1, len(addrs)):
            s(f'v_cmp_ne_u64 s[12:13], s[{sE}:{sE+1}], v[{vt+2*i}:{vt+2*i+1}]\ns_or_b64 vcc, vcc, s[12:13]')
        s(f's_cbranch_vccz {D}\ns_sleep {sleep}\ns_sub_u32 s15, s15, 1\ns_cbranch_scc0 {L}\n{D}:')
        if mask is not None: s('s_mov_b64 exec, -1')
    def set_flag(s, sidx, vt):
        s(f's_lshl_b32 s14, s{sidx}, 7\ns_add_u32 s14, s14, {FLAG0}\ns_mov_b64 exec, 1')
        s(f'v_mov_b32 v{vt}, s{sE}\nv_mov_b32 v{vt+1}, s{sE+1}')
        s(f'buffer_store_dwordx2 v[{vt}:{vt+1}], off, s[{rWS}:{rWS+3}], s14 sc1\ns_mov_b64 exec, -1')
    def lds_add(s, addr_v, vt, off=0, rtn=False):
        s(f's_mov_b64 exec, 1\nv_mov_b32 v{vt}, 1')
        if rtn: s(f'ds_add_rtn_u32 v{vt}, v{addr_v}, v{vt} offset:{off}')
        else: s(f'ds_add_u32 v{addr_v}, v{vt} offset:{off}')
        s('s_mov_b64 exec, -1')
    def lds_spin(s, addr_v, off, val, vt, sleep=1):
        L, D = s.lab('Lspin'), s.lab('Lsd')
        s(f's_mov_b32 s15, {SPIN}\n{L}:\nds_read_b32 v{vt}, v{addr_v} offset:{off}\ns_waitcnt lgkmcnt(0)\nv_readfirstlane_b32 s14, v{vt}')
        s(f's_cmp_ge_u32 s14, {val}\ns_cbranch_scc1 {D}\ns_sleep {sleep}\ns_sub_u32 s15, s15, 1\ns_cbranch_scc0 {L}\n{D}:')
    def last_arriver_flag(s, vz, off, n, sidx_code, vt):
        S = s.lab('Lnf')
        s('s_waitcnt vmcnt(0)')
        s.lds_add(vz, vt, off, rtn=True)
        s(f's_waitcnt lgkmcnt(0)\nv_readfirstlane_b32 s14, v{vt}\ns_cmp_eq_u32 s14, {n-1}\ns_cbranch_scc0 {S}')
        s(sidx_code); s.set_flag(13, vt); s(f'{S}:')
    def next_rb(s, sr):
        s(f's_add_u32 s{sr}, s{sr}, 1\ns_cmp_eq_u32 s{sr}, 9\ns_cselect_b32 s{sr}, 0, s{sr}')
    def wq_slot_base(s, sd, sr):
        s(f's_cmp_lt_u32 s{sr}, 5\ns_cselect_b32 s{sd}, 3, 6\ns_add_u32 s{sd}, s{sd}, s{sr}\ns_mul_i32 s{sd}, s{sd}, {CH}')
    def piece_decode(s, cls, vrho, vpc, t):
        s(f'v_lshl_add_u32 v{t}, {cls}, 6, v{LANE}')
        s(f'v_mul_u32_u24 v{vrho}, 7282, v{t}\nv_lshrrev_b32 v{vrho}, 16, v{vrho}')
        s(f'v_mul_u32_u24 v{vpc}, 9, v{vrho}\nv_sub_u32 v{vpc}, v{t}, v{vpc}')
        s(f'v_bfe_u32 v{t}, v{vrho}, 1, 2\nv_and_or_b32 v{t}, v{vrho}, 56, v{t}\nv_and_b32 v{vrho}, 1, v{vrho}\nv_lshl_or_b32 v{vrho}, v{vrho}, 2, v{t}')
    def kv_chunk_dma(s, sG, slds, vl16):
        s(f's_mul_i32 s12, s{sG}, {CH}\ns_add_u32 s12, s12, {KV0}\ns_mov_b32 s13, s{slds}')
        for grp in range(3):
            s('s_mov_b32 m0, s13')
            for p in range(4 if grp < 2 else 1):
                s(f'buffer_load_dwordx4 v{vl16}, s[{rWS}:{rWS+3}], s12 offen offset:{1024*p} sc1 lds')
            if grp < 2: s('s_add_u32 s12, s12, 4096\ns_add_u32 s13, s13, 4096')

    def entry(s):
        s(f'''s_cmp_ge_u32 s2, 256
s_cbranch_scc1 Lend
s_load_dwordx16 s[16:31], s[0:1], 0
s_load_dwordx8 s[32:39], s[0:1], 64
s_load_dwordx4 s[40:43], s[0:1], 96''')
        if s.diag: s('s_memrealtime s[62:63]'); s.stamp(0)
        if not s.o.get('nopf'):
            s('v_cmp_gt_u32 vcc, 128, v0\ns_cbranch_vccz Lnopf\ns_getpc_b64 s[12:13]\nLpc:\ns_lshr_b32 s14, s2, 3\ns_lshl_b32 s14, s14, 11\nv_lshl_add_u32 v4, v0, 4, s14')
            s('v_min_u32 v4, Lend-Lpc-12, v4\nglobal_load_dwordx4 v[160:163], v4, s[12:13]\nLnopf:')
        s(f'''v_lshrrev_b32 v2, 6, v0
v_and_b32 v{LANE}, 63, v0
v_readfirstlane_b32 s3, v2
v_mov_b32 v3, 0
v_lshlrev_b32 v4, 2, v{LANE}
v_add_u32 v4, {CNT}, v4
s_and_b32 s4, s2, 7
s_lshl_b32 s4, s4, 2
s_bfe_u32 s5, s2, 0x20003
s_add_u32 s{sQB}, s4, s5
s_lshr_b32 s{sHG}, s2, 5
s_add_u32 s{sROT}, s{sQB}, s{sHG}
s_mul_i32 s10, s{sROT}, 57
s_lshr_b32 s10, s10, 9
s_mul_i32 s10, s10, 9
s_sub_u32 s{sROT}, s{sROT}, s10
s_bfe_u32 s{sCROT}, s2, 0x30003
s_cmp_lg_u32 s3, 0
s_cbranch_scc1 Lnoinit
ds_write_b32 v4, v3
Lnoinit:
s_waitcnt lgkmcnt(0)''')
        s.stamp(10)
        if s.o.get('tlb'):
            pages = [(pX, 0), (pX, 0x200000), (pWK, 0), (pWV, 0), (pGW, 0), (pWQ, 0), (pWS, 0), (pWS, 0x200000)]
            late = [(pWS, 0x400000), (pWS, 0x600000), (pCD, 0), (pSD, 0), (pWO, 0), (pOUT, 0), (pOUT, 0x200000)] + [(p, o) for p in (pCS, pSS) for o in (0, 0x200000, 0x400000)]
            s('s_cmp_eq_u32 s3, 6\ns_cbranch_scc0 Lnotlb')
            for lst in (pages, late) if s.o['tlb'] == '2' else (pages,):
                for p, o in lst:
                    if o: s(f's_mov_b32 s14, {o}\ns_load_dword s96, s[{p}:{p+1}], s14')
                    else: s(f's_load_dword s96, s[{p}:{p+1}], 0')
            s('Lnotlb:')
        s.srd(rWS, pWS, WS_USED)
        s(f'v_mov_b32 v3, {CNT}')
        s('s_cmp_ge_u32 s3, 8\ns_cbranch_scc1 Lhelper')
        s('s_and_b32 s10, s3, 3\ns_lshr_b32 s11, s3, 2')
        s('s_cmp_eq_u32 s10, 0\ns_cbranch_scc1 Lrole0\ns_cmp_eq_u32 s3, 1\ns_cbranch_scc1 Lrole1\ns_cmp_eq_u32 s3, 6\ns_cbranch_scc1 Lrole1')

    def rowconst(s, j):
        s(f's_movk_i32 s14, 1024\ns_cmp_eq_u32 s{j}, 1\ns_cselect_b32 s33, 2048, s14\ns_cselect_b32 s34, 1536, s14\ns_cmp_eq_u32 s{j}, 0\ns_cselect_b32 s33, 0, s33\ns_cselect_b32 s34, 0, s34\ns_cmp_eq_u32 s{j}, 3\ns_cselect_b32 s34, 512, s34')
        s(f's_add_u32 s14, s{j}, 1\ns_and_b32 s14, s14, 2\ns_sub_i32 s35, 1, s14\ns_lshl_b32 s32, s{sQB}, 4')
    def role_loader(s):
        D = int(s.o.get('D', 3))
        s.stamp(12)
        s('s_sub_u32 s60, s3, 1\ns_lshr_b32 s60, s60, 1      ; a')
        s.srd(rA, pWQ, 576*1152)
        if s.o.get('wpf'):
            s(f's_lshr_b32 s12, s2, 3\ns_mul_i32 s12, s12, 20736\ns_mul_i32 s13, s60, 5184\ns_add_u32 s12, s12, s13\nv_lshlrev_b32 v4, 4, v{LANE}')
            for i in range(5): s(f'buffer_load_dwordx4 v[{144+4*i}:{147+4*i}], v4, s[{rA}:{rA+3}], s12 offen' + (f' offset:{1024*i}' if i < 4 else '') + ('\ns_add_u32 s12, s12, 4096' if i == 3 else ''))
            s(f's_mov_b64 exec, 15\nbuffer_load_dwordx4 v[164:167], v4, s[{rA}:{rA+3}], s12 offen offset:1024\ns_mov_b64 exec, -1')
        s.stamp(9)
        s(f's_add_u32 s61, s60, 4\ns_mul_i32 s12, s{sHG}, 144')
        for k, cls in enumerate(('s60', 's61', '8')):
            s.piece_decode(cls, 10, 11, 12)
            s(f'v_mul_u32_u24 v10, 1152, v10\nv_lshl_add_u32 v10, v11, 4, v10\nv_add_u32 v{5+k}, s12, v10')
        s(f's_lshl_b32 s12, s60, 2\nv_add_u32 v8, s12, v3\ns_lshl_b32 s58, s60, 10\ns_lshl_b32 s59, s61, 10\ns_mov_b32 s57, s{sROT}')
        s.attn_init()
        s('s_barrier              ; B0')
        s.stamp(11)
        s.load_epoch()
        s.lds_spin(3, cKS-CNT, int(s.o.get('KS', 4)), 9, sleep=0)
        s.stamp(2)
        s('s_setprio 2')
        def prog(p, n): s(f's_waitcnt vmcnt({n})\nv_mov_b32 v9, {p}\nds_write_b32 v8, v9 offset:{cPR-CNT}')
        done = 0
        for i in range(9):
            if i == 7: s.lds_spin(3, cXR-CNT, 6, 9, sleep=0)
            base = WQS[i]*CH
            s(f's_mul_i32 s55, s57, {64*1152}')
            s(f's_add_u32 m0, s58, {base}\nbuffer_load_dwordx4 v5, s[{rA}:{rA+3}], s55 offen lds')
            s(f's_add_u32 m0, s59, {base}\nbuffer_load_dwordx4 v6, s[{rA}:{rA+3}], s55 offen lds')
            S = s.lab('Lc8')
            s(f's_cmp_eq_u32 s60, {i%4}\ns_cbranch_scc0 {S}\ns_mov_b32 m0, {base+8192}\nbuffer_load_dwordx4 v7, s[{rA}:{rA+3}], s55 offen lds\n{S}:')
            if i < 8: s.next_rb(57)
            if i >= D: done = i-D+1; prog(done, 2*D)
        while done < 9: done += 1; prog(done, 2*(9-done))
        s('s_setprio 0')
        s.get_epoch(2)
        s.stamp(1)
        s('s_and_b32 s12, s60, 1\ns_cbranch_scc1 Lattn')
        s(f's_lshl_b32 s57, s11, 3')
        for k in (1, 2):
            s(f's_add_u32 s{57+k}, s{sCROT}, {k}\ns_and_b32 s{57+k}, s{57+k}, 7\ns_add_u32 s{57+k}, s{57+k}, s57')
        s(f's_mul_i32 s12, s58, {12*128}\ns_mul_i32 s13, s59, {12*128}\ns_sub_u32 s13, s13, {12*128}')
        s(f'v_mov_b32 v6, s12\nv_mov_b32 v7, s13\nv_cmp_gt_u32 vcc, 12, v{LANE}\nv_cndmask_b32 v6, v7, v6, vcc')
        s(f'v_lshl_add_u32 v6, v{LANE}, 7, v6\nv_add_u32 v6, {FLAG0+FK*128}, v6\nv_lshlrev_b32 v5, 4, v{LANE}')
        s.poll([6], 8, mask='0xffffff', sleep=2)
        for k in (1, 2):
            s(f's_add_u32 s60, s57, {k}\ns_mul_i32 s60, s60, {CH}')
            s.kv_chunk_dma(57+k, 60, 5)
        s.stamp(3)
        s('s_branch Lattn')

    def role0(s):
        s('Lrole0:\ns_setprio 3')
        if s.diag and s.o.get('waitE'): s('s_waitcnt vmcnt(0)')
        s.stamp(12)
        s(f'v_lshlrev_b32 v5, 4, v{LANE}')
        s(f's_cmp_ge_u32 s{sHG}, 6\ns_cbranch_scc1 Lnoex')
        s(f's_cmp_lt_u32 s{sHG}, 3'); s.srd_sel(rA, pWK, pWV, 576*36)
        s(f's_cmp_lt_u32 s{sHG}, 3\ns_cselect_b32 s12, 0, 3\ns_sub_u32 s12, s{sHG}, s12\ns_lshl_b32 s12, s12, 4')
        s(f'v_mul_u32_u24 v6, 36, v{LANE}\nv_add_u32 v6, s12, v6')
        s(f's_mul_i32 s57, s11, 5\ns_add_u32 s57, s57, s{sROT}\ns_cmp_ge_u32 s57, 9\ns_cselect_b32 s12, 9, 0\ns_sub_u32 s57, s57, s12\ns_mul_i32 s13, s11, 5120\ns_add_u32 s13, s13, {EXL}')
        for b in range(5):
            if b == 4: s('s_cmp_eq_u32 s11, 1\ns_cbranch_scc1 Lnoex')
            s(f's_mul_i32 s12, s57, 2304\ns_mov_b32 m0, s13\nbuffer_load_dwordx4 v6, s[{rA}:{rA+3}], s12 offen lds\ns_add_u32 s13, s13, 1024')
            if b < 4: s.next_rb(57)
        s('Lnoex:')
        s.stamp(9)
        s('s_barrier              ; B0')
        s.stamp(11)
        s('s_waitcnt vmcnt(0)')
        s.lds_add(3, 7, cE-CNT)
        s.load_epoch()
        s('s_cmp_eq_u32 s11, 0\ns_cbranch_scc1 Lnogw')
        s.srd(rB, pGW, 1152)
        s(f's_lshl_b32 s12, s{sROT}, 3\nv_add_u32 v6, s12, v{LANE}\nv_subrev_u32 v7, 72, v6\nv_min_u32 v7, v6, v7\nv_lshlrev_b32 v7, 4, v7')
        s(f's_mov_b32 m0, {GWL}\nbuffer_load_dwordx4 v7, s[{rB}:{rB+3}], 0 offen lds')
        s(f'v_add_u32 v6, 64, v6\nv_subrev_u32 v7, 72, v6\nv_min_u32 v7, v6, v7\nv_lshlrev_b32 v7, 4, v7')
        s(f's_mov_b32 m0, {GWL+1024}\nbuffer_load_dwordx4 v7, s[{rB}:{rB+3}], 0 offen lds')
        s('Lnogw:')
        s('s_waitcnt vmcnt(0)')
        s.lds_add(3, 7, cGW-CNT)
        s.get_epoch(2)
        s('s_setprio 0')
        s.stamp(1)
        s(f's_mul_i32 s56, s11, 5\ns_mul_i32 s60, s{sHG}, 9\ns_lshl_b32 s12, s56, 8\ns_add_u32 s12, s12, {WOT}\nv_lshl_add_u32 v12, v{LANE}, 2, s12')
        for k in range(5):
            if k == 4: s('s_cmp_eq_u32 s11, 1\ns_cbranch_scc1 Lnotab')
            T = 6
            s.piece_decode('s56', T, T+1, T+2)
            s(f'v_add_u32 v{T+1}, s60, v{T+1}')
            s(f'v_lshrrev_b32 v{T+2}, 4, v{T}\nv_mul_u32_u24 v{T+2}, 18, v{T+2}\nv_and_b32 v{T+3}, 3, v{T}\nv_add_u32 v{T+2}, v{T+2}, v{T+3}')
            s(f'v_bfe_u32 v{T+3}, v{T}, 2, 1\nv_lshl_add_u32 v{T+2}, v{T+3}, 3, v{T+2}\nv_bfe_u32 v{T+3}, v{T}, 3, 1\nv_lshl_add_u32 v{T+2}, v{T+3}, 2, v{T+2}')
            s(f'v_mul_u32_u24 v{T+2}, 72, v{T+2}\nv_add_u32 v{T+4}, v{T+2}, v{T+1}')
            s(f'v_lshrrev_b32 v{T+2}, 1, v{T}\nv_mul_u32_u24 v{T+2}, 18, v{T+2}\nv_and_b32 v{T+3}, 1, v{T}\nv_add3_u32 v{T+2}, v{T+2}, v{T+3}, 16')
            s(f'v_mul_u32_u24 v{T+2}, 72, v{T+2}\nv_add_u32 v{T+2}, v{T+2}, v{T+1}\nv_lshl_or_b32 v{T+4}, v{T+2}, 16, v{T+4}')
            s(f'ds_write_b32 v12, v{T+4} offset:{256*k}\ns_add_u32 s56, s56, 1')
        s('Lnotab:')
        s.attn_init()
        s('s_mov_b32 s53, 0')
        s.cached_wait(53, int(s.o.get('PG', 8)), cPR-CNT, 8, 4)
        s.lds_spin(3, cXR-CNT, 6, 7, sleep=1)
        s(f's_lshl_b32 s60, s11, 3\ns_add_u32 s61, s60, s{sCROT}      ; G0\ns_mul_i32 s12, s61, {12*128}\ns_add_u32 s12, s12, {FLAG0+FK*128}')
        s(f'v_lshlrev_b32 v6, 7, v{LANE}\nv_add_u32 v6, s12, v6')
        s.poll([6], 8, mask='0xfff', sleep=1)
        s.stamp(2)
        s(f's_mul_i32 s60, s60, {CH}')
        s.kv_chunk_dma(61, 60, 5)
        s('s_waitcnt vmcnt(0) lgkmcnt(0)')
        s.stamp(3)
        s('s_branch Lattn')

    def role1(s):
        s('Lrole1:')
        s.stamp(12)
        s(f's_lshl_b32 s12, s11, 6\nv_add_u32 v5, s12, v{LANE}        ; it')
        s(f'v_cmp_le_u32 vcc, 80, v5                 ; special\ns_mov_b64 s[58:59], vcc')
        s(f'v_and_b32 v6, 15, v5\nv_lshrrev_b32 v7, 4, v5\nv_subrev_u32 v8, 80, v5\nv_cndmask_b32 v7, v7, v8, s[58:59]     ; pi')
        s(f's_mul_i32 s12, s{sHG}, 5\nv_add_u32 v7, s12, v7          ; piece')
        s(f'v_cndmask_b32 v6, v6, 0, s[58:59]')
        s(f's_cmp_eq_u32 s{sQB}, 0\ns_cselect_b32 s12, 5, 0\ns_add_u32 s12, s12, 80\nv_cmp_gt_u32 s[60:61], s12, v5\nv_cmp_gt_u32 vcc, 38, v7\ns_and_b64 s[60:61], s[60:61], vcc')
        s(f'v_min_u32 v7, 37, v7')
        s(f's_cmp_eq_u32 s{sQB}, 0\ns_cselect_b64 s[12:13], -1, 0\nv_cmp_eq_u32 vcc, 0, v6\ns_and_b64 s[56:57], vcc, s[12:13]')
        s('s_andn2_b64 s[54:55], s[56:57], s[58:59]     ; plain s==0')
        s(f'v_lshrrev_b32 v9, 1, v6\nv_lshlrev_b32 v10, 7, v6')
        s(f'v_sub_u32 v11, 71, v7\nv_sub_u32 v12, 72, v7\nv_min_u32 v12, 71, v12\ns_sub_u32 s12, 9, s{sROT}')
        for src, dst in ((7, 13), (11, 14), (12, 15)):
            s(f'v_lshrrev_b32 v16, 3, v{src}\nv_add_u32 v16, s12, v16\nv_subrev_u32 v17, 9, v16\nv_min_u32 v16, v16, v17          ; pos')
            s(f'v_lshlrev_b32 v17, 13, v16\nv_mul_u32_u24 v18, {CH}, v16')
            s(f'v_add_u32 v18, {13*CH}, v18\nv_subrev_u32 v19, {2*8192}, v17\nv_cmp_gt_u32 vcc, 2, v16\nv_cndmask_b32 v18, v19, v18, vcc')
            s(f'v_add_u32 v19, {8*CH-5*8192}, v17\nv_cmp_gt_u32 vcc, 5, v16\nv_cndmask_b32 v18, v19, v18, vcc')
            s(f'v_mov_b32 v19, {16*CH}\nv_cmp_gt_u32 vcc, 8, v16\nv_cndmask_b32 v18, v19, v18, vcc')
            s(f'v_xor_b32 v17, v{src}, v9\nv_and_b32 v17, 7, v17\nv_lshl_add_u32 v17, v17, 4, v10\nv_add_u32 v{dst}, v17, v18')
        s(f'v_mov_b32 v16, {3*2048}\nv_cndmask_b32 v16, 0, v16, s[58:59]')
        for r in (13, 14, 15): s(f'v_add_u32 v{r-3}, v{r}, v16')
        RAW = 20
        s.stamp(3)
        s('s_barrier              ; B0')
        s.stamp(11)
        s.load_epoch()
        s.lds_spin(3, cXL-CNT, 4, 16, sleep=0)
        for j in range(4):
            ad = (10, 11, 12) if j == 0 else (13, 14, 15)
            s(f'ds_read_b128 v[{RAW+8*j}:{RAW+8*j+3}], v{ad[0]} offset:{2048*j}')
            s(f'ds_read_b128 v[{RAW+8*j+4}:{RAW+8*j+7}], v{ad[1]} offset:{2048*j}')
            s(f'ds_read_u16 v{52+j}, v{ad[2]} offset:{2048*j}')
        s(f'v_cmp_gt_u32 vcc, 36, v7\nv_cndmask_b32 v17, 0, -1, vcc             ; mB')
        s(f'v_cmp_eq_u32 vcc, 36, v7\nv_mov_b32 v16, 0xffff\nv_cndmask_b32 v16, v17, v16, vcc       ; mA')
        s(f'v_cmp_eq_u32 s[12:13], 0, v7\ns_or_b64 vcc, vcc, s[12:13]\nv_cndmask_b32 v18, -1, 0, vcc     ; mC')
        s(f's_lshr_b32 s12, s{sQB}, 1\nv_mov_b32 v9, s12\nv_cndmask_b32 v9, v9, 16, s[58:59]      ; sigma')
        s(f'v_mul_u32_u24 v9, 19, v9\nv_lshrrev_b32 v10, 1, v7\nv_add_lshl_u32 v9, v9, v10, 10')
        s(f's_and_b32 s12, s{sQB}, 1\ns_lshl_b32 s12, s12, 4\nv_add_u32 v10, s12, v6')
        s(f'v_and_b32 v11, 1, v7\nv_lshl_add_u32 v10, v11, 5, v10\nv_lshl_add_u32 v19, v10, 4, v9')
        s('s_waitcnt vmcnt(0) lgkmcnt(0)')
        s.lds_add(3, 8, cXR-CNT)
        s.get_epoch(2)
        for j, m in ((1, 's[54:55]'), (2, 's[58:59]'), (3, 's[56:57]')):
            s(f's_mov_b64 exec, {m}')
            for r in list(range(RAW+8*j, RAW+8*j+8))+[52+j]: s(f'v_mov_b32 v{r}, 0')
        s('s_mov_b64 exec, -1')
        A = 56; B = 88; P = 120
        for j in range(4):
            d = RAW+8*j; m = d+4
            for q in range(4):
                s(f'v_lshlrev_b32 v{A+8*j+2*q}, 16, v{d+q}\nv_and_b32 v{A+8*j+2*q+1}, 0xffff0000, v{d+q}')
            s(f'v_and_b32 v{52+j}, v18, v{52+j}\nv_lshlrev_b32 v{B+8*j}, 16, v{52+j}')
            for i in range(1, 8):
                pos = 8-i
                if pos & 1: s(f'v_and_b32 v{B+8*j+i}, 0xffff0000, v{m+pos//2}')
                else: s(f'v_lshlrev_b32 v{B+8*j+i}, 16, v{m+pos//2}')
        pk = lambda d, a, b, neg=False: s(f'v_pk_add_f32 v[{d}:{d+1}], v[{a}:{a+1}], v[{b}:{b+1}]' + (' neg_lo:[0,1] neg_hi:[0,1]' if neg else ''))
        for r in range(0, 32, 2):
            pk(P+r, A+r, B+r); pk(B+r, A+r, B+r, True)
        for i in range(0, 8, 2):
            pk(A+i, P+i, P+8+i); pk(A+8+i, P+16+i, P+24+i)
            pk(A+16+i, B+i, B+8+i, True); pk(A+24+i, B+16+i, B+24+i, True)
            pk(P+i, A+i, A+8+i); pk(P+8+i, A+i, A+8+i, True)
            pk(P+16+i, A+16+i, A+24+i, True); pk(P+24+i, A+16+i, A+24+i)
        s('s_mov_b64 exec, s[60:61]')
        L = s.lab('Lnofold'); s(f's_cbranch_execz {L}')
        for ty in range(4):
            for q in range(4):
                s(f'v_cvt_pk_bf16_f32 v{RAW+4*ty+q}, v{P+8*ty+2*q}, v{P+8*ty+2*q+1}')
                s(f'v_and_b32 v{RAW+4*ty+q}, v{16 if q==0 else 17}, v{RAW+4*ty+q}')
            s(f's_mov_b32 s12, {F0+ty*17*19*1024}\nbuffer_store_dwordx4 v[{RAW+4*ty}:{RAW+4*ty+3}], v19, s[{rWS}:{rWS+3}], s12 offen sc1')
        s(f'{L}:\ns_mov_b64 exec, -1')
        s.stamp(1)
        s.attn_init()
        s.last_arriver_flag(3, cF-CNT, 2, f's_lshl_b32 s13, s{sQB}, 3\ns_add_u32 s13, s13, s{sHG}\ns_add_u32 s13, s13, {FF}', 8)
        s.stamp(2)

    S = [16, 32]; O = [48, 64]; QA = [80, 84]; QB = [88, 92]
    KA = [96, 100]; KB = [104, 108]; V = [112, 120]; M = [128, 129]
    IDX, AK, AV, AB, CA, Q0, Q1, EPA, EPB, EPT, EPM, T = 130, 131, 132, 133, 134, 135, 136, 137, 138, 139, 140, 142
    def attn_init(s):
        S, O, QA, QB, KA, KB, V, M = s.S, s.O, s.QA, s.QB, s.KA, s.KB, s.V, s.M
        a, b, c = 142, 143, 144
        s(f's_mul_i32 s31, s11, {8*CH}')
        s(f'v_and_b32 v{a}, 31, v{LANE}\nv_lshrrev_b32 v{b}, 5, v{LANE}')
        s(f'v_lshl_add_u32 v{s.AK}, v{LANE}, 4, s31')
        s(f'v_mul_u32_u24 v{c}, 288, v{b}\nv_lshl_add_u32 v{c}, v{a}, 4, v{c}\nv_add_u32 v{s.AV}, s31, v{c}')
        s(f'v_lshl_add_u32 v{s.AB}, v{a}, 4, s31')
        s(f's_lshl_b32 s12, s11, 2\nv_add_u32 v{s.CA}, s12, v3')
        s(f'v_mov_b32 v{s.IDX}, 0xdddddddd')
        s(f'v_cmp_eq_u32 vcc, 18, v{a}\nv_cmp_eq_u32 s[12:13], 20, v{a}\ns_or_b64 vcc, vcc, s[12:13]\nv_mov_b32 v{c}, 0x3f803f80\nv_cndmask_b32 v{c}, 0, v{c}, vcc')
        for k in range(2):
            for i in range(8): s(f'v_mov_b32 v{V[k]+i}, v{c}')
            for i in range(4): s(f'v_mov_b32 v{KB[k]+i}, 0x3f80')
        s(f'v_cmp_gt_u32 s[36:37], 18, v{a}')
        for t in range(2):
            for i in range(16): s(f'v_mov_b32 v{O[t]+i}, 0')
            for i in range(4): s(f'v_mov_b32 v{QB[t]+i}, 0')
        s(f's_mul_i32 s12, s10, 36\ns_add_u32 s12, s12, {QXL}\nv_mul_u32_u24 v{c}, 160, v{a}\nv_add_u32 v{s.Q0}, s12, v{c}\nv_lshl_add_u32 v{s.Q1}, v{b}, 4, v{s.Q0}')
        s(f's_mul_i32 s12, s10, 6144\ns_add_u32 s12, s12, {PART}\nv_lshl_add_u32 v{s.EPA}, v{LANE}, 4, s12')
        s(f's_lshl_b32 s12, s10, 2\nv_add_u32 v{s.EPB}, s12, v3')
        s(f'v_and_b32 v{a}, 15, v{LANE}\nv_bfe_u32 v{c}, v{LANE}, 4, 1')
        s(f'v_mul_u32_u24 v{c}, {18*1024}, v{c}\nv_lshl_add_u32 v{s.EPT}, v{a}, 4, v{c}          ; (q>>4)*18K + s*16')
        s(f'v_lshl_add_u32 v{s.EPM}, v{b}, 8, v{s.EPT}                    ; + h*256')
        s(f's_mul_i32 s12, s{sQB}, {4*18*1024}\ns_add_u32 s12, s12, {O0}')
        s(f's_lshl_b32 s13, s{sHG}, 11\ns_lshl_b32 s14, s10, 9\ns_add_u32 s13, s13, s14\ns_add_u32 s38, s12, s13     ; main')
        s(f's_lshl_b32 s13, s{sHG}, 8\ns_lshl_b32 s14, s10, 2\ns_add_u32 s13, s13, s14\ns_add_u32 s13, s13, {16*1024}\ns_add_u32 s39, s12, s13    ; tail')

    def attention(s):
        S, O, QA, QB, KA, KB, V, M = s.S, s.O, s.QA, s.QB, s.KA, s.KB, s.V, s.M
        IDX, AK, AV, AB, CA, T = s.IDX, s.AK, s.AV, s.AB, s.CA, s.T
        s('Lattn:\ns_setprio 0')
        if s.o.get('aprio'): s(f"s_cmp_eq_u32 s11, {s.o['aprio'][0]}\ns_cbranch_scc0 Lnp\ns_setprio 1\nLnp:")
        s.stamp(4)
        s('s_barrier                 ; B5')
        s.stamp(5)
        for t in range(2): s(f'ds_read_b128 v[{QA[t]}:{QA[t]+3}], v{s.Q1} offset:{t*32*160}')
        nkb = 32
        def off(kb):
            c, j = kb//4, kb % 4
            return c*CH + j*1024, c*CH + 4096 + j*1152, c*CH + 8704
        st = {AK: 0, AV: 0, AB: 0}
        def bump(r, o, c):
            if o - st[r] > 65535 - 4096:
                d = c*CH - st[r]; st[r] += d
                return [f'v_add_u32 v{r}, {d}, v{r}']
            return []
        def readsK(kb):
            ka, vv, kbo = off(kb); b = kb % 2
            out = bump(AK, ka, kb//4)
            out.append(f'ds_read_b128 v[{KA[b]}:{KA[b]+3}], v{AK} offset:{ka-st[AK]}')
            if kb % 4 == 0:
                kb4 = KB[(kb//4) % 2]
                out += bump(AB, kbo, kb//4)
                out += ['s_mov_b32 exec_hi, 0', f'ds_read_b128 v[{kb4}:{kb4+3}], v{AB} offset:{kbo-st[AB]}', 's_mov_b64 exec, -1']
            return out
        def readsV(kb):
            ka, vv, kbo = off(kb); b = kb % 2
            out = bump(AV, vv, kb//4)
            return out + ['s_mov_b64 exec, s[36:37]', f'ds_read_b128 v[{V[b]}:{V[b]+3}], v{AV} offset:{vv-st[AV]}',
                          f'ds_read_b128 v[{V[b]+4}:{V[b]+7}], v{AV} offset:{vv+576-st[AV]}', 's_mov_b64 exec, -1']
        s('s_mov_b32 exec_hi, 0')
        for t in range(2): s(f'ds_read_b32 v{QB[t]}, v{s.Q0} offset:{t*32*160+32}')
        s('s_mov_b64 exec, -1')
        for l in readsK(0)+readsV(0)+readsK(1): s(l)
        def QK1(u):
            t = u % 2; b = (u//2) % 2
            return f'v_mfma_f32_32x32x16_bf16 v[{S[t]}:{S[t]+15}], v[{KA[b]}:{KA[b]+3}], v[{QA[t]}:{QA[t]+3}], 0'
        def QK2(u):
            t = u % 2; kb = u//2; a = KB[(kb//4) % 2] + (kb & 2); q = QB[t] + 2*(kb & 1)
            return f'v_mfma_f32_32x32x8_bf16 v[{S[t]}:{S[t]+15}], v[{a}:{a+1}], v[{q}:{q+1}], v[{S[t]}:{S[t]+15}]'
        def PV(u, h):
            t = u % 2; b = (u//2) % 2
            return f'v_smfmac_f32_32x32x32_bf16 v[{O[t]}:{O[t]+15}], v[{V[b]+4*h}:{V[b]+4*h+3}], v[{S[t]+8*h}:{S[t]+8*h+7}], v{IDX}'
        s('s_waitcnt lgkmcnt(0)')
        for t in range(2): s(QK1(t)); s(QK2(t))
        s(f'v_cmp_gt_u32 vcc, 32, v{LANE}')
        for t in range(2):
            x = S[t]
            s(f'v_max3_f32 v{x}, v{x}, v{x+1}, v{x+2}\nv_max3_f32 v{x+3}, v{x+3}, v{x+4}, v{x+5}')
            s(f'v_max3_f32 v{x+6}, v{x+6}, v{x+7}, v{x+8}\nv_max3_f32 v{x+9}, v{x+9}, v{x+10}, v{x+11}')
            s(f'v_max3_f32 v{x+12}, v{x+12}, v{x+13}, v{x+14}\nv_max3_f32 v{x}, v{x}, v{x+3}, v{x+6}')
            s(f'v_max3_f32 v{x+9}, v{x+9}, v{x+12}, v{x+15}\nv_max_f32 v{x}, v{x}, v{x+9}\nv_mov_b32 v{x+1}, v{x}')
        for t in range(2): s(f'v_permlane32_swap_b32 v{S[t]}, v{S[t]+1}')
        for t in range(2):
            x = S[t]
            s(f'v_max_f32 v{x}, v{x}, v{x+1}\nv_sub_f32 v{x}, {fbits(-SHIFT)}, v{x}        ; -(m+SHIFT)')
            s(f'v_and_b32 v{M[t]}, 0xffff0000, v{x}\nv_lshrrev_b32 v{x}, 16, v{x}')
            s(f'v_cndmask_b32 v{QB[t]}, v{x}, v{QB[t]}, vcc\nv_mov_b32 v{QB[t]+3}, v{QB[t]}')
        s.stamp(6)
        s(QK1(0)); s(QK2(0))
        NU = 2*nkb
        p0 = len(s.e.pads)
        for u in range(NU):
            kb = u//2; t = u % 2
            e = [f'v_exp_f32 v{S[t]+i}, v{S[t]+i}' for i in range(16)]
            pre = []; chk = []
            add = lambda av, of: ['s_mov_b64 exec, 1', f'v_mov_b32 v{T}, 1', f'ds_add_u32 v{av}, v{T} offset:{of}', 's_mov_b64 exec, -1']
            nl = 0
            if u == 3: pre += ['s_waitcnt vmcnt(0)'] + add(CA, cK1-CNT)
            if u == 22: pre += add(CA, cP2-CNT)
            if u == 38: pre += add(CA, cP4-CNT)
            if u in ((5, 21) if s.o.get('nocouple') else (5, 21, 37)):
                D = s.lab('Lok')
                av, of = {5: (CA, cK1-CNT), 21: (3, cK2-CNT), 37: (CA, cK2-CNT)}[u]
                pre += [f'v_readfirstlane_b32 s14, v{T+1}', 's_cmp_ge_u32 s14, 4', f's_cbranch_scc1 {D}', ('spin', av, of), f'{D}:']
            if u == 4: pre.append(f'ds_read_b32 v{T+1}, v{CA} offset:{cK1-CNT}')
            if u == 20: pre.append(f'ds_read_b32 v{T+1}, v3 offset:{cK2-CNT}')
            if u == 36: pre.append(f'ds_read_b32 v{T+1}, v{CA} offset:{cK2-CNT}')
            rd = []
            if t == 0 and kb+1 < nkb: rd = readsV(kb+1)
            if t == 1 and kb+2 < nkb: rd = readsK(kb+2)
            pre += rd
            pre.append(f"s_waitcnt lgkmcnt({sum('ds_read' in x for x in rd)})")
            pv2 = [PV(u-1, 1)] if u > 0 else []
            qk1 = [QK1(u+1)] if u+1 < NU else []
            qk2 = [QK2(u+1)] if u+1 < NU else []
            od = int(s.o.get('order', 3))
            if od == 0: seq = e[0:2]+pv2+e[2:4]+qk1+e[4:7]+qk2+e[7:9]+pre+e[9:11]+[PV(u, 0)]+e[11:16]
            if od == 1: seq = e[0:2]+pv2+e[2:4]+qk1+e[4:8]+qk2+e[8:10]+pre+e[10:12]+[PV(u, 0)]+e[12:16]
            if od == 2: seq = e[0:2]+pv2+e[2:5]+qk1+e[5:8]+qk2+e[8:10]+pre+e[10:12]+[PV(u, 0)]+e[12:16]
            if od == 3: seq = e[0:2]+pv2+e[2:4]+qk1+e[4:7]+qk2+e[7:11]+[PV(u, 0)]+e[11:13]+pre+e[13:16]
            if od == 4: seq = e[0:2]+pv2+e[2:3]+qk1+e[3:6]+qk2+e[6:10]+[PV(u, 0)]+e[10:12]+pre+e[12:16]
            if od == 5: seq = e[0:2]+pv2+qk1+qk2+e[2:10]+[PV(u, 0)]+pre+e[10:16]
            for l in seq:
                if isinstance(l, tuple): s.lds_spin(l[1], l[2], 4, T)
                else: s(l)
        s(PV(NU-1, 1))
        s.loop_pads = s.e.pads[p0:]
        s.stamp(7)
        s('s_cmp_eq_u32 s11, 0\ns_cbranch_scc0 Lkh1')
        s.lds_add(3, T, cA-CNT)
        s.lds_spin(3, cA-CNT, 4, T, sleep=0)
        for t in range(2):
            s(f'v_mov_b32 v{O[t]+11}, v{M[t]}')
            for m in range(3): s(f'ds_write_b128 v{s.EPA}, v[{O[t]+4*m}:{O[t]+4*m+3}] offset:{t*3072+m*1024}')
        s('s_waitcnt lgkmcnt(0)')
        s.lds_add(s.EPB, T, cB-CNT)
        s.stamp(8)
        s.flush_stamps(13, 10)
        s('s_endpgm')
        s('Lkh1:')
        s.lds_spin(s.EPB, cB-CNT, 1, T, sleep=0)
        for t in range(2):
            for m in range(3): s(f'ds_read_b128 v[{S[t]+4*m}:{S[t]+4*m+3}], v{s.EPA} offset:{t*3072+m*1024}')
        s(f'v_cmp_gt_u32 vcc, 32, v{LANE}')
        s('s_waitcnt lgkmcnt(0)')
        for t in range(2):
            o = O[t]; p = S[t]; a, b, c, d = 96+4*t, 97+4*t, 98+4*t, 99+4*t
            s(f'v_min_f32 v{c}, v{M[t]}, v{p+11}\nv_sub_f32 v{a}, v{c}, v{M[t]}\nv_sub_f32 v{b}, v{c}, v{p+11}\nv_exp_f32 v{a}, v{a}\nv_exp_f32 v{b}, v{b}')
            s(f'v_cndmask_b32 v{c}, v{o+8}, v{o+10}, vcc\nv_cndmask_b32 v{d}, v{p+8}, v{p+10}, vcc')
            s(f'v_mul_f32 v{c}, v{c}, v{a}\nv_fmac_f32 v{c}, v{d}, v{b}\nv_rcp_f32 v{c}, v{c}')
            s(f'v_mul_f32 v{c}, {fbits(2.0**-24)}, v{c}\nv_mul_f32 v{a}, v{a}, v{c}\nv_mul_f32 v{b}, v{b}, v{c}')
            for i in range(10): s(f'v_mul_f32 v{o+i}, v{o+i}, v{a}')
            for i in range(10): s(f'v_fmac_f32 v{o+i}, v{p+i}, v{b}')
            for j in range(5): s(f'v_cvt_pk_bf16_f32 v{o+j}, v{o+2*j}, v{o+2*j+1}')
            s(f'buffer_store_dwordx4 v[{o}:{o+3}], v{s.EPM}, s[{rWS}:{rWS+3}], s38 offen sc1')
            s(f's_mov_b32 exec_hi, 0\nbuffer_store_dword v{o+4}, v{s.EPT}, s[{rWS}:{rWS+3}], s39 offen sc1\ns_mov_b64 exec, -1')
            if t == 0: s(f's_add_u32 s38, s38, {2*18*1024}\ns_add_u32 s39, s39, {2*18*1024}')
        s.lds_add(3, T, cD-CNT)
        s.stamp(8)
        s.last_arriver_flag(3, cC-CNT, 4, f's_lshl_b32 s13, s{sQB}, 3\ns_add_u32 s13, s13, s{sHG}\ns_add_u32 s13, s13, {FO}', 10)
        s.stamp(9)
        s.flush_stamps(13, 10)
        s('s_endpgm')

    def gemm(s, X, W, ACC, addr_of, pre_pos=None):
        def rd(ks, n):
            i, kk = ks//2, ks % 2
            if kk == 0 and n == 0 and pre_pos: pre_pos(i)
            v, b = addr_of(i); w = W[ks % 2]
            for e in range(2):
                s(f'ds_read_b64_tr_b16 v[{w+4*n+2*e}:{w+4*n+2*e+1}], v{v} offset:{b+kk*4608+n*32+e*144}')
        for n in range(5): rd(0, n)
        for ks in range(18):
            yield ks
            for n in range(5):
                s(f's_waitcnt lgkmcnt({8 if ks+1 < 18 else 8-2*n})')
                w = W[ks % 2]+4*n; c = f'v[{ACC+4*n}:{ACC+4*n+3}]'
                s(f'v_mfma_f32_16x16x32_bf16 {c}, v[{w}:{w+3}], v[{X+4*ks}:{X+4*ks+3}], {c if ks else 0}')
                if ks+1 < 18: rd(ks+1, n)

    def rowcalc(s, vs, vd, vt):
        s(f'v_mad_i32_i24 v{vd}, v{vs}, s35, 0\nv_add_u32 v{vd}, s33, v{vd}\nv_mov_b32 v{vt}, s34\nv_cmp_eq_u32 vcc, 0, v{vs}\nv_cndmask_b32 v{vd}, v{vd}, v{vt}, vcc')

    def cached_wait(s, sc, val, off, T, nw, av=3, sleep=True):
        D = s.lab('Lpg'); L = s.lab('Lpl')
        s(f's_cmp_ge_u32 s{sc}, {val}\ns_cbranch_scc1 {D}\ns_mov_b32 s15, {SPIN}\n{L}:')
        if nw == 1: s(f'ds_read_b32 v{T}, v{av} offset:{off}\ns_waitcnt lgkmcnt(0)')
        else:
            s(f'ds_read_b128 v[{T}:{T+3}], v3 offset:{off}\ns_waitcnt lgkmcnt(0)\nv_min3_u32 v{T}, v{T}, v{T+1}, v{T+2}')
            if nw == 4: s(f'v_min_u32 v{T}, v{T}, v{T+3}')
        s(f'v_readfirstlane_b32 s{sc}, v{T}\ns_cmp_ge_u32 s{sc}, {val}\ns_cbranch_scc1 {D}')
        if nw != 4 and sleep: s('s_sleep 1')
        s(f's_sub_u32 s15, s15, 1\ns_cbranch_scc0 {L}\n{D}:')
    def lds_set(s, addr_v, off, val, T):
        s(f'v_mov_b32 v{T}, {val}\nds_write_b32 v{addr_v}, v{T} offset:{off}')

    def helper(s):
        X = 8; EXF = 80; W = [80, 100]; ACC = 120; KACC = 152; GACC = 152
        SW, L3, FA, RD, P0, P1, VB = 140, 142, 143, 144, 148, 149, 150
        ROW, PAT, QA_, KA_, EXA, GWA, L16, PRG, T = 156, 157, 158, 159, 160, 161, 162, 163, 164
        mprio = s.o.get('mprio', '0')
        s('Lhelper:')
        s('s_setprio 3\ns_sub_u32 s10, s3, 8           ; j')
        s('s_mov_b64 s[26:27], s[34:35]')
        pWO2 = 26; GC = [16, 17, 36, 37]
        s.rowconst(10)
        s(f'v_lshrrev_b32 v{L3}, 3, v{LANE}\nv_lshrrev_b32 v5, 4, v{LANE}\nv_xor_b32 v{SW}, v5, v{LANE}\nv_and_b32 v{SW}, 7, v{SW}\nv_lshlrev_b32 v{SW}, 4, v{SW}\nv_xor_b32 v{SW+1}, 64, v{SW}')
        s.srd(rA, pX, 2048*1152)
        XA = 96
        s(f'v_add_u32 v4, s32, v{L3}\nv_mad_i32_i24 v7, v4, s35, 0\nv_add_u32 v7, s33, v7\nv_mov_b32 v6, s34\nv_cmp_eq_u32 vcc, 0, v4\ns_mul_i32 s12, s35, {8*1152}\nv_cndmask_b32 v6, v7, v6, vcc')
        s(f'v_mul_u32_u24 v6, 1152, v6\nv_mul_u32_u24 v7, 1152, v7\nv_add_u32 v{XA}, v6, v{SW}\nv_add3_u32 v{XA+1}, v7, v{SW+1}, s12')
        s(f's_mov_b32 s57, s{sROT}\ns_lshl_b32 s58, s10, 11')
        XD = int(s.o.get('XD', 6))
        def xdma(i):
            s('s_lshl_b32 s12, s57, 7')
            for m in range(2):
                s(f's_add_u32 m0, s58, {XL[i]+1024*m}\nbuffer_load_dwordx4 v{XA+m}, s[{rA}:{rA+3}], s12 offen lds')
            if i < 8: s.next_rb(57)
        pc = []
        pc.append(f'v_and_b32 v4, 15, v{LANE}\nv_lshrrev_b32 v6, 1, v4\nv_xor_b32 v6, v6, v5\nv_lshlrev_b32 v6, 4, v6\nv_lshl_add_u32 v6, v4, 7, v6\nv_add_u32 v6, s58, v6\nv_xor_b32 v7, 64, v6\n'
                  f'v_lshrrev_b32 v{T}, 2, v4\nv_lshl_add_u32 v{T}, v5, 3, v{T}\nv_lshlrev_b32 v{EXA}, 4, v{T}\nv_and_b32 v{T+1}, 1, v4\nv_lshl_add_u32 v{EXA}, v{T+1}, 3, v{EXA}\nv_add_u32 v{EXA}, {EXL}, v{EXA}')
        pc.append(f's_lshr_b32 s13, s{sQB}, 1\ns_mul_i32 s56, s13, {CH}\ns_add_u32 s56, s56, {KV0}\ns_and_b32 s13, s{sQB}, 1\n'
                  f's_lshl_b32 s14, s13, 1\ns_lshr_b32 s59, s10, 1\ns_add_u32 s59, s59, s14        ; kb\n'
                  f's_lshl_b32 s13, s13, 2\ns_add_u32 s13, s13, s10\ns_mul_i32 s13, s13, 576\ns_lshl_b32 s14, s{sHG}, 7\ns_add_u32 s13, s13, s14\ns_add_u32 s60, s13, {4096-3*128}      ; V offset\n'
                  f's_lshl_b32 s13, s59, 10\ns_lshl_b32 s14, s{sHG}, 9\ns_add_u32 s13, s13, s14        ; Ka offset\n'
                  f's_lshl_b32 s14, s59, 2\ns_add_u32 s14, s14, 8704\ns_cmp_eq_u32 s{sHG}, 2\ns_cselect_b32 s13, s14, s13\ns_cmp_ge_u32 s{sHG}, 3\ns_cselect_b32 s13, s60, s13\ns_add_u32 s56, s56, s13')
        pc.append(f's_and_b32 s14, s10, 1\ns_lshl_b32 s14, s14, 4\nv_add_lshl_u32 v{T}, v4, s14, 4\nv_lshl_add_u32 v{KA_}, v5, 3, v{T}        ; K: row*16 + 8g\n'
                  f'v_lshrrev_b32 v{T}, 1, v5\nv_mul_u32_u24 v{T}, 288, v{T}\nv_lshl_add_u32 v{T}, v4, 4, v{T}\nv_and_b32 v{T+1}, 1, v5\nv_lshl_add_u32 v{T}, v{T+1}, 3, v{T}\n'
                  f's_cmp_ge_u32 s{sHG}, 3\ns_cselect_b64 vcc, -1, 0\nv_cndmask_b32 v{KA_}, v{KA_}, v{T}, vcc\n'
                  f's_cmp_eq_u32 s{sHG}, 5\ns_cselect_b32 s13, 2, 8\nv_cmp_gt_u32 s[60:61], s13, v4')
        pc.append(f'v_lshlrev_b32 v{GWA}, 4, v5\nv_add_u32 v{GWA}, {GWL}, v{GWA}\n'
                  f'v_lshrrev_b32 v{T}, 2, v4\nv_lshlrev_b32 v{T}, 1, v{T}\nv_lshl_add_u32 v{T}, v5, 3, v{T}\nv_mul_u32_u24 v{T}, 144, v{T}\nv_and_b32 v{T+1}, 3, v4\nv_lshl_add_u32 v{PAT}, v{T+1}, 3, v{T}\n'
                  f'v_add_u32 v{P0}, {3*CH}, v{PAT}\nv_add_u32 v{P1}, {11*CH}, v{PAT}\nv_lshlrev_b32 v{L16}, 4, v{LANE}')
        pc.append(f's_lshl_b32 s13, s10, 4\nv_add_u32 v{T}, s13, v4\nv_mul_u32_u24 v{T}, 160, v{T}\nv_lshl_add_u32 v{T}, v5, 3, v{T}\nv_add_u32 v{QA_}, {QXL}, v{T}\n'
                  f'v_add_u32 v{T}, s32, v4\nv_mad_i32_i24 v{ROW}, v{T}, s35, 0\nv_add_u32 v{ROW}, s33, v{ROW}\nv_mov_b32 v{T+1}, s34\nv_cmp_eq_u32 vcc, 0, v{T}\ns_lshl_b32 s13, s10, 2\nv_add_u32 v{PRG}, s13, v3\nv_cndmask_b32 v{ROW}, v{ROW}, v{T+1}, vcc')
        pc.append(f'v_and_b32 v{T}, 31, v{LANE}\nv_bfe_u32 v{T+1}, v{LANE}, 1, 3\nv_lshrrev_b32 v{RD}, 5, v{LANE}\nv_xor_b32 v{T+1}, v{T+1}, v{RD}\nv_lshlrev_b32 v{T+1}, 4, v{T+1}\nv_lshl_add_u32 v{T+1}, v{T}, 7, v{T+1}\n'
                  + '\n'.join(f'v_xor_b32 v{RD+k}, {32*k}, v{T+1}\nv_add_u32 v{RD+k}, {RING}, v{RD+k}' for k in range(4)))
        blk = 's_add_u32 s28, s10, 3\ns_add_u32 s29, s10, 6\ns_cmp_eq_u32 s10, 2\ns_cselect_b32 s29, 12, s29\ns_cmp_eq_u32 s10, 3\ns_cselect_b32 s28, 11, s28\ns_cselect_b32 s29, 13, s29\ns_cselect_b32 s30, 14, s28\ns_cselect_b32 s31, 15, s28\n'
        for k in range(4):
            blk += f's_add_u32 s13, s{28+k}, s{sCROT}\ns_and_b32 s13, s13, 7\ns_and_b32 s14, s{28+k}, 8\ns_add_u32 s{GC[k]}, s13, s14\n'
        pc.append(blk)
        blk = ''
        for k in range(4):
            blk += f's_sub_u32 s13, s{GC[k]}, {k}\ns_mul_i32 s13, s13, {12*128}\ns_add_u32 s13, s13, {FLAG0+FK*128}\n'
            blk += f'v_mov_b32 v{FA}, s13\n' if k == 0 else f'v_mov_b32 v{T}, s13\nv_cmp_le_u32 vcc, {12*k}, v{LANE}\nv_cndmask_b32 v{FA}, v{FA}, v{T}, vcc\n'
        pc.append(blk + f'v_lshl_add_u32 v{FA}, v{LANE}, 7, v{FA}')
        for i in range(max(XD, len(pc))):
            if i < XD: xdma(i)
            if i < len(pc): s(pc[i])
        s('s_barrier              ; B0')
        def xpass(mf):
            cur = 0
            for i in range(9):
                if XL[i] - cur > 65535 or XL[i] < cur:
                    nb = XL[i]
                    s(f'v_add_u32 v6, {(nb-cur) & 0xffffffff}, v6\nv_add_u32 v7, {(nb-cur) & 0xffffffff}, v7'); cur = nb
                s(f's_waitcnt vmcnt({2*(min(9, XD+i)-i-1)})')
                if i == 8: s.lds_add(3, T+2, cXL-CNT)
                for kk in range(2): s(f'ds_read_b128 v[{X+8*i+4*kk}:{X+8*i+4*kk+3}], v{6+kk} offset:{XL[i]-cur}')
                if mf:
                    for kk in range(2):
                        for e in range(2):
                            r = EXF+8*(i % 2)+4*kk+2*e
                            s(f'ds_read_b64_tr_b16 v[{r}:{r+1}], v{EXA} offset:{i*1024+kk*512+e*64}')
                if XD+i < 9: xdma(XD+i)
                if XD+i == int(s.o.get('XI', 8)): s.lds_add(3, T+2, cKS-CNT); extra = 1
                else: extra = 0
                if mf and i: s(f's_waitcnt lgkmcnt({6+extra})'); mf(2*i-2); mf(2*i-1)
            s('s_waitcnt lgkmcnt(0)')
            if mf: mf(16); mf(17)
            s.lds_add(3, T+2, cXR-CNT)
        s.lds_spin(3, cE-CNT, 2, T, sleep=0)
        s.stamp(1)
        kc = f'v[{KACC}:{KACC+3}]'
        ex = lambda ks: f'v[{EXF+8*((ks//2)%2)+4*(ks%2)}:{EXF+8*((ks//2)%2)+4*(ks%2)+3}]'
        s(f's_cmp_ge_u32 s{sHG}, 3\ns_cbranch_scc1 Lvpass')
        xpass(lambda ks: s(f'v_mfma_f32_16x16x32_bf16 {kc}, {ex(ks)}, v[{X+4*ks}:{X+4*ks+3}], {kc if ks else 0}'))
        s(f'v_cvt_pk_bf16_f32 v{KACC}, v{KACC}, v{KACC+1}\nv_cvt_pk_bf16_f32 v{KACC+1}, v{KACC+2}, v{KACC+3}')
        s(f's_cmp_eq_u32 s{sHG}, 2\ns_cbranch_scc1 Lkb')
        s(f's_mov_b32 exec_hi, 0\nbuffer_store_dwordx2 v[{KACC}:{KACC+1}], v{KA_}, s[{rWS}:{rWS+3}], s56 offen sc1\ns_mov_b64 exec, -1\ns_branch Lnokv')
        s(f'Lkb:\ns_mov_b64 exec, 0xffff\nbuffer_store_dword v{KACC}, v{KA_}, s[{rWS}:{rWS+3}], s56 offen sc1\ns_mov_b64 exec, -1\ns_branch Lnokv')
        s(f'Lxonly:')
        xpass(None)
        s('s_branch Lnokv')
        s(f'Lvpass:\ns_cmp_ge_u32 s{sHG}, 6\ns_cbranch_scc1 Lxonly')
        xpass(lambda ks: s(f'v_mfma_f32_16x16x32_bf16 {kc}, v[{X+4*ks}:{X+4*ks+3}], {ex(ks)}, {kc if ks else 0}'))
        for i in range(4): s(f'v_mul_f32 v{KACC+i}, {fbits(2.0**24)}, v{KACC+i}')
        s(f'v_cvt_pk_bf16_f32 v{KACC}, v{KACC}, v{KACC+1}\nv_cvt_pk_bf16_f32 v{KACC+1}, v{KACC+2}, v{KACC+3}')
        s(f's_mov_b64 exec, s[60:61]\nbuffer_store_dwordx2 v[{KACC}:{KACC+1}], v{KA_}, s[{rWS}:{rWS+3}], s56 offen sc1\ns_mov_b64 exec, -1')
        s('Lnokv:')
        s.load_epoch()
        s.stamp(2)
        gc = f'v[{GACC}:{GACC+3}]'
        s.lds_spin(3, cGW-CNT, 2, T, sleep=0)
        for k in range(12): s(f'ds_read_b128 v[{80+4*k}:{83+4*k}], v{GWA} offset:{64*k}')
        for ks in range(18):
            r = 80+4*(ks % 12)
            s(f's_waitcnt lgkmcnt({min(11, 17-ks)})')
            s(f'v_mfma_f32_16x16x32_bf16 {gc}, v[{r}:{r+3}], v[{X+4*ks}:{X+4*ks+3}], {gc if ks else 0}')
            if ks+12 < 18: s(f'ds_read_b128 v[{r}:{r+3}], v{GWA} offset:{64*(ks+12)}')
        s('s_lshr_b32 s12, s2, 3\ns_mul_i32 s13, s12, 43\ns_lshr_b32 s13, s13, 8\ns_mul_i32 s14, s13, 6\ns_sub_u32 s14, s12, s14\ns_mul_i32 s14, s14, 3\ns_add_u32 s53, s14, s10        ; sigma')
        s('s_cmp_ge_u32 s12, 30\ns_cselect_b32 s53, 99, s53\ns_and_b32 s14, s2, 1\ns_mul_i32 s14, s14, 5\ns_add_u32 s52, s13, s14       ; eps1')
        s('s_lshr_b32 s55, s2, 4\ns_bfe_u32 s13, s2, 0x10003\ns_mul_i32 s12, s13, 3\ns_add_u32 s12, s12, s10        ; 3b+j')
        s('s_cmp_eq_u32 s12, 5\ns_cselect_b32 s12, s55, s12\ns_cselect_b32 s13, 16, s55\ns_cmp_eq_u32 s10, 3\ns_cselect_b32 s55, s55, s13       ; theta')
        s('s_add_u32 s54, s12, s14       ; eps2\ns_cmp_ge_u32 s12, 5\ns_cselect_b32 s59, 1, 0       ; H2 invalid\ns_bfe_u32 s61, s2, 0x20001       ; type')
        s(f's_cmp_eq_u32 s53, 16\ns_cselect_b32 s12, 0, s53\ns_cselect_b32 s13, 7, 15\ns_lshl_b32 s12, s12, 11\ns_add_u32 s12, s12, {FLAG0+FF*128}')
        s(f'v_and_b32 v{T}, s13, v{LANE}\nv_lshl_add_u32 v{T}, v{T}, 7, s12\nv_cmp_le_u32 vcc, 48, v{LANE}\nv_cndmask_b32 v{FA}, v{FA}, v{T}, vcc')
        s('s_cmp_lt_u32 s53, 17\ns_cselect_b32 s91, 0xffff0000, 0\ns_mov_b32 s90, 0xffffff\ns_cmp_eq_u32 s10, 3\ns_cselect_b32 s91, 0xffff, s91\ns_cselect_b32 s90, -1, s90')
        s('s_waitcnt vmcnt(0)')
        s.get_epoch(2)
        s(f's_cmp_ge_u32 s{sHG}, 6\ns_cbranch_scc1 Lnofk')
        s.last_arriver_flag(3, cKV-CNT, 4, f's_mul_i32 s13, s{sQB}, 6\ns_add_u32 s13, s13, s{sHG}\ns_add_u32 s13, s13, {FK}', T)
        s('Lnofk:')
        s.stamp(3)
        s('s_mov_b32 s58, 0')
        qw = {'a': {0: 3, 3: 6, 6: 8, 8: 9}, 'b': {0: 4, 4: 7, 7: 9}, 'c': {0: 2, 2: 4, 4: 6, 6: 8, 8: 9}, 'd': {0: 5, 5: 8, 8: 9}}[s.o.get('qw', 'c')]
        for ks in s.gemm(X, W, ACC, lambda i: (P0, i*CH) if i < 5 else (P1, (i-5)*CH), lambda i: qw.get(i) and s.cached_wait(58, qw[i], cPR-CNT, T, 4)): pass
        for n in range(5):
            a = ACC+4*n
            for i in range(4): s(f'v_mul_f32 v{a+i}, {fbits(CSCALE)}, v{a+i}')
            s(f'v_cvt_pk_bf16_f32 v{a}, v{a}, v{a+1}\nv_cvt_pk_bf16_f32 v{a+1}, v{a+2}, v{a+3}\nds_write_b64 v{QA_}, v[{a}:{a+1}] offset:{32*n}')
        s('s_waitcnt lgkmcnt(0)')
        s.stamp(4)
        s('s_barrier                 ; B5')
        s('s_cmp_eq_u32 s10, 3\ns_cbranch_scc1 Lproducer')
        AF, BF, DA = 8, 104, 120
        s.poll([FA], T, mask='s[90:91]', sleep=2)
        for k in range(2):
            s(f's_mul_i32 s60, s{28+k}, {CH}')
            s.kv_chunk_dma(GC[k], 60, L16)
        s('s_mov_b32 s58, 0')
        def units(nks, g0, win, sA):
            nu = -(-nks//4); issued = min(nks, 4*win)
            for u in range(nu):
                n = min(4, nks-4*u); pos = (g0+u) % 6
                s.cached_wait(58, g0+u+1, cRL-CNT, T, 1)
                for k in range(n): s(f'ds_read_b128 v[{BF+4*k}:{BF+4*k+3}], v{RD+k} offset:{pos*4096}')
                s(f's_waitcnt vmcnt({issued-4*u-n})')
                if g0 == 0 and u == 0: s.lds_add(3, T, cK2-CNT); s.stamp(5)
                s(f's_waitcnt lgkmcnt(0)')
                s.lds_set(PRG, cRC-CNT, g0+u+1, T)
                s(f's_setprio {mprio}')
                for k in range(n):
                    a = AF+16*(u % win)+4*k
                    s(f'v_mfma_f32_32x32x16_bf16 v[{DA}:{DA+15}], v[{a}:{a+3}], v[{BF+4*k}:{BF+4*k+3}], {f"v[{DA}:{DA+15}]" if 4*u+k else 0}')
                s('s_setprio 3')
                if issued < nks: issued += lda(nks, u+win, win, sA)
        def lda(nks, u, win, sA):
            n = min(4, nks-4*u)
            for k in range(n):
                a = AF+16*(u % win)+4*k
                s(f'buffer_load_dwordx4 v[{a}:{a+3}], v{L16}, s[{rWS}:{rWS+3}], s{sA} offen offset:{1024*k} sc1')
            s(f's_add_u32 s{sA}, s{sA}, 4096')
            return n
        s('s_cmp_lt_u32 s53, 17\ns_cbranch_scc1 Lh1')
        s.lds_set(PRG, cRC-CNT, 5, T)
        s('s_waitcnt vmcnt(0)')
        s.lds_add(3, T, cK2-CNT)
        s('s_branch Lh1done\nLh1:')
        s(f's_mul_i32 s12, s61, 17\ns_add_u32 s12, s12, s53\ns_mul_i32 s56, s12, {19*1024}\ns_add_u32 s56, s56, {F0}')
        s('s_cmp_eq_u32 s53, 16\ns_cbranch_scc0 Lnozero')
        for i in range(76): s(f'v_mov_b32 v{AF+i}, 0')
        s('s_mov_b32 exec_lo, 1\ns_mov_b32 exec_hi, 1\nLnozero:')
        for u in range(5): lda(19, u, 5, 56)
        s('s_mov_b64 exec, -1')
        units(19, 0, 5, 56)
        s(f's_mul_i32 s12, s61, 10\ns_add_u32 s12, s12, s52\ns_mul_i32 s13, s12, 17\ns_add_u32 s57, s13, s53\ns_mul_i32 s56, s12, {34*1024}\ns_lshl_b32 s12, s53, 11\ns_add_u32 s56, s56, s12\ns_add_u32 s56, s56, {U0}')
        for q in range(8): s(f'v_cvt_pk_bf16_f32 v{DA+q}, v{DA+2*q}, v{DA+2*q+1}')
        for a in range(2):
            s(f'v_permlane32_swap_b32 v{DA+4*a}, v{DA+4*a+2}\nv_permlane32_swap_b32 v{DA+4*a+1}, v{DA+4*a+3}')
            s(f'buffer_store_dwordx4 v[{DA+4*a}:{DA+4*a+3}], v{L16}, s[{rWS}:{rWS+3}], s56 offen offset:{a*1024} sc1')
        s(f's_add_u32 s13, s57, {FU}\ns_waitcnt vmcnt(0)')
        s.set_flag(13, T)
        s('Lh1done:')
        s.stamp(6)
        s('s_cmp_eq_u32 s59, 0\ns_cbranch_scc1 Lh2')
        s.lds_set(PRG, cRC-CNT, 14, T)
        s('s_branch Lh2done\nLh2:')
        s(f's_mul_i32 s12, s61, 10\ns_add_u32 s12, s12, s54\ns_mul_i32 s57, s12, 17\ns_mul_i32 s56, s12, {34*1024}\ns_add_u32 s56, s56, {U0}')
        s(f's_add_u32 s12, s57, {FU}\ns_lshl_b32 s12, s12, 7\ns_add_u32 s12, s12, {FLAG0}\nv_lshl_add_u32 v{FA}, v{LANE}, 7, s12')
        s(f's_lshl_b32 s12, s55, 6\ns_and_b32 s13, s61, 1\ns_add_u32 s60, s12, s13        ; t0')
        s('s_cmp_eq_u32 s55, 16\ns_cbranch_scc1 Lh2x')
        s.poll([FA], T, mask='0x1ffff', sleep=4)
        for u in range(6): lda(33, u, 6, 56)
        units(33, 5, 6, 56)
        s('Lh2st:')
        s(f's_lshr_b32 s12, s61, 1\ns_mul_i32 s56, s12, {YK}\ns_mul_i32 s12, s54, {8*YQ}\ns_add_u32 s56, s56, s12\ns_add_u32 s56, s56, {Y0}')
        s(f'v_and_b32 v{T}, 31, v{LANE}\nv_lshl_add_u32 v{T}, v{T}, 1, s60\nv_lshrrev_b32 v{T+1}, 5, v{LANE}\nv_mul_u32_u24 v{T+1}, {YQ}, v{T+1}\nv_lshl_add_u32 v{T}, v{T}, 3, v{T+1}')
        s('s_nop 4')
        for jj in range(4):
            d = DA+4*jj
            s(f'v_cvt_pk_bf16_f32 v{d}, v{d}, v{d+1}\nv_cvt_pk_bf16_f32 v{d+1}, v{d+2}, v{d+3}')
            s(f'buffer_store_dwordx2 v[{d}:{d+1}], v{T}, s[{rWS}:{rWS+3}], s56 offen sc1')
            if jj < 3: s(f's_add_u32 s56, s56, {2*YQ}')
        s(f's_waitcnt vmcnt(0)\ns_add_u32 s13, s57, s55\ns_add_u32 s13, s13, {FY}')
        s.set_flag(13, T)
        s('s_branch Lh2done')
        s('Lh2x:')
        s.lds_set(PRG, cRC-CNT, 14, T)
        s('s_cmp_lt_u32 s61, 2'); s.srd_sel(rB, pCS, pSS, 2048*4096)
        s(f'v_lshrrev_b32 v{VB}, 1, v{LANE}\ns_lshl_b32 s12, s60, 12\nv_add_u32 v{VB}, s12, v{VB}')
        s.poll([FA], T, mask='0x1ffff', sleep=4)
        for b in range(3):
            for k in range(11):
                if k % 4 == 0 and (k or b): s(f's_add_u32 s56, s56, {4096 if k else 3072}')
                s(f'buffer_load_dwordx4 v[{8+4*k}:{11+4*k}], v{L16}, s[{rWS}:{rWS+3}], s56 offen offset:{1024*(k%4)} sc1')
            s('s_mov_b32 exec_lo, 1\ns_mov_b32 exec_hi, 1')
            for k in range(11): s(f'buffer_load_dwordx4 v[{52+4*k}:{55+4*k}], v{VB}, s[{rB}:{rB+3}], 0 offen offset:{32*(11*b+k)}')
            s(f's_mov_b64 exec, -1\ns_waitcnt vmcnt(0)\ns_setprio {mprio}')
            for k in range(11):
                s(f'v_mfma_f32_32x32x16_bf16 v[{DA}:{DA+15}], v[{8+4*k}:{11+4*k}], v[{52+4*k}:{55+4*k}], {f"v[{DA}:{DA+15}]" if b+k else 0}')
            s('s_setprio 3')
        s('s_branch Lh2st')
        s('Lproducer:')
        def dma(g, u):
            for m in range(4):
                s(f's_mov_b32 m0, {RING+(g%6)*4096+m*1024}')
                if m % 2 == 0: s(f's_add_u32 s12, s52, {128*u}' if m else f's_mov_b32 s12, {128*u}')
                s(f'buffer_load_dwordx4 v{VB+(m&1)}, s[{rB}:{rB+3}], s12 offen lds')
        def landed(g, n):
            s(f's_waitcnt vmcnt({n})'); s.lds_set(3, cRL-CNT, g+1, T)
        s('s_cmp_lt_u32 s61, 2'); s.srd_sel(rB, pCD, pSD, 576*1152)
        s(f's_lshl_b32 s12, s52, 5\nv_add_u32 v{T}, s12, v{L3}\nv_mul_u32_u24 v{T}, 1152, v{T}\nv_add_u32 v{VB}, v{T}, v{SW}\nv_add_u32 v{VB+1}, v{T}, v{SW+1}\nv_add_u32 v{VB+1}, {8*1152}, v{VB+1}\ns_mov_b32 s52, {16*1152}')
        for u in range(5): dma(u, u)
        s('s_cmp_lt_u32 s61, 2'); s.srd_sel(rB, pCS, pSS, 2048*4096)
        s(f's_lshl_b32 s12, s55, 6\ns_and_b32 s13, s61, 1\ns_add_u32 s12, s12, s13\nv_lshl_add_u32 v{T}, v{L3}, 1, s12\nv_lshl_add_u32 v{VB}, v{T}, 12, v{SW}\nv_lshl_add_u32 v{VB+1}, v{T}, 12, v{SW+1}')
        s(f'v_add_u32 v{VB+1}, {16*4096}, v{VB+1}\ns_mov_b32 s52, {32*4096}')
        dma(5, 0)
        for g in range(5): landed(g, 4*(5-g))
        s.poll([FA], T, mask='s[90:91]', sleep=2)
        s.lds_set(3, cRL-CNT, 6, T)
        s(f's_mov_b32 s60, {11*CH}')
        s.kv_chunk_dma(GC[0], 60, L16)
        s.srd(rA, pDBG, 256)
        s(f's_mov_b64 exec, 1\nv_mov_b32 v{T+2}, 1\nbuffer_atomic_add v{T+2}, off, s[{rA}:{rA+3}], 0 sc0 sc1\ns_mov_b64 exec, -1\ns_waitcnt vmcnt(1)')
        s.lds_add(3, T, cK2-CNT)
        s.stamp(5)
        s(f's_waitcnt vmcnt(0)\nv_readfirstlane_b32 s12, v{T+2}\ns_cmp_eq_u32 s12, 255\ns_cbranch_scc0 Lnoep')
        s(f's_mov_b64 exec, 1\nv_mov_b32 v{T}, s{sE}\nbuffer_store_dword v{T}, off, s[{rWS}:{rWS+3}], 0 sc1\ns_mov_b64 exec, -1\ns_waitcnt vmcnt(0)\nLnoep:')
        s('s_mov_b32 s58, 0')
        s.cached_wait(58, 5, cRC-CNT, T, 3)
        for g in range(6, 11): dma(g, g-5)
        for g in range(6, 11): landed(g, 4*(10-g))
        s.stamp(6)
        for g in range(11, 14):
            s.cached_wait(58, g-5, cRC-CNT, T, 3); dma(g, g-5)
        for g in range(11, 14): landed(g, 4*(13-g))
        s.cached_wait(58, 14, cRC-CNT, T, 3)
        for k in range(1, 4):
            s(f's_mov_b32 s60, {(12+k)*CH}')
            s.kv_chunk_dma(GC[k], 60, L16)
        s('s_waitcnt vmcnt(0)')
        s.lds_set(3, cK3-CNT, 4, T)
        s('Lh2done:')
        s.stamp(7)
        WOA, WOB = 8, 11
        s.srd(rA, pWO2, 576*1152)
        s(f's_lshl_b32 s58, s10, 10\ns_add_u32 s59, s58, 4096\ns_lshl_b32 s12, s10, 8\ns_add_u32 s12, s12, {WOT}\nv_lshl_add_u32 v14, v{LANE}, 2, s12\nv_lshrrev_b32 v15, 2, v{L16}\nv_add_u32 v15, {WOT+2048}, v15')
        for k, (av, of) in enumerate(((14, 0), (14, 1024), (15, 0))):
            s(f'ds_read_u16 v{WOA+k}, v{av} offset:{of}\nds_read_u16 v{WOB+k}, v{av} offset:{of+2}')
        s.lds_spin(3, cP4-CNT, 4, T, sleep=8)
        for k in range(6): s(f'v_lshlrev_b32 v{WOA+k}, 4, v{WOA+k}')
        s.lds_spin(3, cP2+4-CNT, 4, T, sleep=8)
        for rb in range(9):
            base = CH*(rb if rb < 5 else (rb+3 if rb < 8 else 16))
            v = WOA if rb < 8 else WOB
            so = rb*72*1152 if rb < 8 else 0
            s(f's_mov_b32 s55, {so}')
            s(f's_add_u32 m0, s58, {base}\nbuffer_load_dwordx4 v{v}, s[{rA}:{rA+3}], s55 offen lds')
            s(f's_add_u32 m0, s59, {base}\nbuffer_load_dwordx4 v{v+1}, s[{rA}:{rA+3}], s55 offen lds')
            S = s.lab('Lw8')
            s(f's_cmp_eq_u32 s10, {rb%4}\ns_cbranch_scc0 {S}\ns_mov_b32 m0, {base+8192}\nbuffer_load_dwordx4 v{v+2}, s[{rA}:{rA+3}], s55 offen lds\n{S}:')
        s.stamp(8)
        TP = 143; YR = 84; YX = 104
        s(f'v_sub_u32 v{T}, 2048, v{ROW}\nv_min_u32 v{TP}, v{T}, v{ROW}')
        s(f's_mul_i32 s54, s{sHG}, 72\ns_sub_u32 s12, 505, s54\ns_cmp_lt_u32 s{sHG}, 4\ns_cselect_b32 s12, s54, s12      ; emin')
        s(f's_add_u32 s13, s12, 71\ns_lshr_b32 s12, s12, 5\ns_lshr_b32 s13, s13, 5\nv_add_u32 v8, s12, v5\nv_min_u32 v8, s13, v8        ; eps')
        s(f'v_and_b32 v9, 1, v{TP}\nv_mad_u32_u24 v8, v9, 10, v8\nv_mul_u32_u24 v8, 17, v8\nv_lshrrev_b32 v9, 6, v{TP}\nv_add_lshl_u32 v8, v8, v9, 7')
        s(f'v_add_u32 v8, {FLAG0+FY*128}, v8\nv_add_u32 v9, {20*17*128}, v8')
        s(f's_mul_i32 s12, s{sHG}, 18\ns_sub_u32 s13, 143, s12\ns_cmp_lt_u32 s{sHG}, 4\ns_cselect_b32 s12, s12, s13\ns_cselect_b32 s13, 1, -1\ns_mul_i32 s12, s12, {YQ}\ns_add_u32 s56, s12, {Y0}\ns_mul_i32 s57, s13, {YQ}\ns_lshl_b32 s58, s57, 2')
        s(f'v_mul_i32_i24 v10, s57, v5\nv_lshl_add_u32 v10, v{TP}, 3, v10\nv_add_u32 v10, s56, v10\nv_add_u32 v11, {YK}, v10\ns_mov_b32 s59, {YQ}')
        if not s.o.get('nodft'): s.poll([8, 9], T, sleep=8)
        for n in range(5):
            s(f'buffer_load_dwordx2 v[{YR+2*n}:{YR+2*n+1}], v10, s[{rWS}:{rWS+3}], 0 offen sc1')
            s(f'buffer_load_dwordx2 v[{YR+10+2*n}:{YR+10+2*n+1}], v11, s[{rWS}:{rWS+3}], 0 offen sc1')
            s(f'buffer_load_ushort v{YX+n}, v10, s[{rWS}:{rWS+3}], s59 offen sc1')
            s(f'buffer_load_ushort v{YX+5+n}, v11, s[{rWS}:{rWS+3}], s59 offen sc1')
            if n < 4: s('v_add_u32 v10, s58, v10\nv_add_u32 v11, s58, v11')
        s('s_waitcnt vmcnt(0)')
        s.lds_add(3, T, cW-CNT)
        s.stamp(9)
        s.lds_spin(3, cD-CNT, 4, T, sleep=2)
        s.stamp(10)
        g, omg, sg = GACC, GACC+1, GACC+2
        s(f'v_mul_f32 v{g}, {fbits(-math.log2(math.e))}, v{g}\nv_exp_f32 v{g}, v{g}\nv_add_f32 v{omg}, 1.0, v{g}\nv_rcp_f32 v{g}, v{omg}\nv_sub_f32 v{omg}, 1.0, v{g}')
        s(f'v_mov_b32 v{T}, 1024\nv_cmp_gt_u32 vcc, v{ROW}, v{T}\ns_cmp_lt_u32 s{sHG}, 4\ns_cselect_b32 s12, 0, -1\ns_mov_b32 s13, s12\ns_xor_b64 vcc, vcc, s[12:13]\nv_cndmask_b32 v{sg}, -1.0, 1.0, vcc       ; -sgn')
        GY = 124
        s(f's_cmp_lt_u32 s{sHG}, 4\ns_cbranch_scc0 Lgyrev')
        for rev in (0, 1):
            if rev: s('Lgyrev:')
            for n in range(5):
                for i in range(4):
                    for kind, d in ((0, T), (1, T+1)):
                        if rev and i == 0: s(f'v_lshlrev_b32 v{d}, 16, v{YX+5*kind+n}'); continue
                        p = 4-i if rev else i
                        r = YR+10*kind+2*n+p//2
                        s(f'v_and_b32 v{d}, 0xffff0000, v{r}' if p & 1 else f'v_lshlrev_b32 v{d}, 16, v{r}')
                    s(f'v_fmac_f32 v{T}, v{sg}, v{T+1}\nv_mul_f32 v{GY+4*n+i}, v{g}, v{T}')
            if not rev: s('s_branch Lgydone')
        s('Lgydone:')
        ACC = 144
        P0, P1, P2, OM = 120, 121, 122, 123
        OW, OG, OR = 7, 164, 0
        s(f'v_mov_b32 v{P0}, v{PAT}\nv_add_u32 v{P1}, {8*CH}, v{PAT}\nv_add_u32 v{P2}, {16*CH}, v{PAT}\nv_mov_b32 v{OM}, v{omg}')
        s(f's_mul_i32 s58, s10, 2560\ns_add_u32 s58, s58, {OXL}\nv_mul_u32_u24 v{OW}, 160, v4\nv_lshl_add_u32 v{OW}, v5, 3, v{OW}\nv_add_u32 v{OW}, s58, v{OW}\ns_mul_i32 s56, s{sHG}, 144')
        ORS = (0, 2, 167)
        for r in range(3):
            s(f'v_add_u32 v80, {64*r}, v{LANE}\nv_mul_u32_u24 v81, 7282, v80\nv_lshrrev_b32 v81, 16, v81\nv_mul_u32_u24 v82, 9, v81\nv_sub_u32 v82, v80, v82\nv_lshlrev_b32 v82, 4, v82')
            s(f'v_mul_u32_u24 v83, 160, v81\nv_add3_u32 v{ORS[r]}, v83, v82, s58\nv_add_u32 v81, s32, v81')
            s.rowcalc(81, 83, 80)
            s(f'v_mul_u32_u24 v83, 1152, v83\nv_add3_u32 v{OG+r}, v83, v82, s56')
        s(f's_lshl_b32 s12, s{sQB}, 10\ns_add_u32 s12, s12, {FLAG0+FO*128}\nv_lshl_add_u32 v4, v{LANE}, 7, s12')
        s.lds_spin(3, cW-CNT, 4, 80, sleep=0)
        s.srd(rA, pOUT, 2048*1152)
        s(f's_lshl_b32 s56, s{sQB}, 2\ns_add_u32 s56, s56, s10\ns_mul_i32 s56, s56, {18*1024}\ns_add_u32 s56, s56, {O0}')
        s.lds_spin(3, cC-CNT, 4, 80, sleep=0)
        s.poll([4], 80, mask='0xff', sleep=0)
        s.stamp(11)
        for ks in range(18):
            if ks % 4 == 0 and ks: s('s_add_u32 s56, s56, 4096')
            s(f'buffer_load_dwordx4 v[{X+4*ks}:{X+4*ks+3}], v{L16}, s[{rWS}:{rWS+3}], s56 offen offset:{1024*(ks%4)} sc1')
        def addr(i):
            if i < 5: return (P0, i*CH)
            if i < 8: return (P1, (i-5)*CH)
            return (P2, 0)
        for ks in s.gemm(X, W, ACC, addr):
            s(f's_waitcnt vmcnt({17-ks})')
            if s.o.get('fst') and ks in (0, 9, 17): s.stamp({0: 1, 9: 2, 17: 3}[ks])
        if s.o.get('fst'): s.stamp(4)
        for n in range(5):
            a = ACC+4*n
            for i in range(4): s(f'v_fma_f32 v{a+i}, v{a+i}, v{OM}, v{GY+4*n+i}')
            s(f'v_cvt_pk_bf16_f32 v{a}, v{a}, v{a+1}\nv_cvt_pk_bf16_f32 v{a+1}, v{a+2}, v{a+3}\nds_write_b64 v{OW}, v[{a}:{a+1}] offset:{32*n}')
        for r in range(3):
            if r == 2: s('s_mov_b64 exec, 0xffff')
            s(f'ds_read_b128 v[{80+4*r}:{83+4*r}], v{ORS[r]}')
        s('s_mov_b64 exec, -1')
        for r in range(3):
            if r == 2: s('s_mov_b64 exec, 0xffff')
            s(f's_waitcnt lgkmcnt({2-r})\nbuffer_store_dwordx4 v[{80+4*r}:{83+4*r}], v{OG+r}, s[{rA}:{rA+3}], 0 offen')
        s('s_mov_b64 exec, -1')
        s.stamp(12)
        s.flush_stamps(13, 2)
        s('Lend:\ns_endpgm')

    def build(s):
        s.entry(); s.role_loader(); s.role0(); s.role1(); s.attention(); s.helper()
        hdr = open('cdna_kernels/%s.s.ref' % NAME).read().split('; Override launch')[0]
        out = hdr + f'; @launch grid=(256,1,1) block=(768,1,1) lds={LDS_BYTES}\n'
        out += f'.amdgcn_target "amdgcn-amd-amdhsa--gfx950"\n.text\n.globl {NAME}_kernel\n.p2align 8\n.type {NAME}_kernel,@function\n{NAME}_kernel:\n'
        out += s.e.text()
        out += f'''.section .rodata,"a"
.p2align 6
.amdhsa_kernel {NAME}_kernel
  .amdhsa_next_free_vgpr 168
  .amdhsa_next_free_sgpr 98
  .amdhsa_accum_offset 168
  .amdhsa_group_segment_fixed_size 0
  .amdhsa_kernarg_size 112
  .amdhsa_user_sgpr_count 2
  .amdhsa_user_sgpr_kernarg_segment_ptr 1
  .amdhsa_system_sgpr_workgroup_id_x 1
.end_amdhsa_kernel
'''
        return out
if __name__ == '__main__':
    diag = 'diag' in sys.argv
    g = G(diag, {a.split('=')[0]: (a.split('=')+['1'])[1] for a in sys.argv[2:]})
    txt = g.build()
    dst = sys.argv[1] if len(sys.argv) > 1 and sys.argv[1].endswith('.s') else f'cdna_kernels/{NAME}.s'
    open(dst, 'w').write(txt)
    print('written', dst, len(txt), 'bytes; loop pads:', len(g.loop_pads))
```
